```python
import torch

def _softmax(x, axis=-1):
    return torch.softmax(x, dim=axis)

def _gelu(x):
    return torch.nn.functional.gelu(x, approximate='tanh')

def _silu(x):
    return torch.nn.functional.silu(x)

def _sigmoid(x):
    return torch.sigmoid(x)

def _layernorm(x, axis=-1, eps=1e-05):
    m = x.mean(dim=axis, keepdim=True)
    v = x.var(dim=axis, keepdim=True, unbiased=False)
    return (x - m) / torch.sqrt(v + eps)

def _scatter_add(tgt, idx, src, axis=0):
    return tgt.clone().index_add_(axis, idx, src)

def _segment_sum(src, seg, n):
    out = torch.zeros((n,) + src.shape[1:], dtype=src.dtype)
    return out.index_add_(0, seg, src)

def _pad(x, pw):
    flat = tuple((v for pair in reversed(pw) for v in pair))
    return torch.nn.functional.pad(x, flat)
kernel_name = 'adaLN_cond__sliding_local_dilated__mixer_s_mlp__prompt'

def setup_inputs():

    _w = lambda a: (lambda t: t.to(torch.bfloat16) if t.is_floating_point() else t)(torch.as_tensor(a))

    def _A_setup():
        B, S, D = (1, 2048, 512)
        return {'x': _w((lambda *s: torch.randn(*s, dtype=torch.bfloat16) * 0.05)(B, S, D)), 'wqkv': _w((lambda *s: torch.randn(*s, dtype=torch.bfloat16) * 0.05)(D, 3 * D)), 'wo': _w((lambda *s: torch.randn(*s, dtype=torch.bfloat16) * 0.05)(D, D))}
    _A_in = _A_setup()

    def _B_setup():
        B, S, D, F = (1, 2048, 512, 1792)
        return {'x': _w((lambda *s: torch.randn(*s, dtype=torch.bfloat16) * 0.05)(B, S, D)), 'w1': _w((lambda *s: torch.randn(*s, dtype=torch.bfloat16) * 3.2)(D, D) * D ** (-0.5)), 'w2': _w((lambda *s: torch.randn(*s, dtype=torch.bfloat16) * 3.2)(D, D) * D ** (-0.5)), 'w3': _w((lambda *s: torch.randn(*s, dtype=torch.bfloat16) * 3.2)(D, F) * D ** (-0.5)), 'w4': _w((lambda *s: torch.randn(*s, dtype=torch.bfloat16) * 3.2)(F, D) * F ** (-0.5))}
    _B_in = _B_setup()
    return {'A_x': _A_in['x'], 'A_wqkv': _A_in['wqkv'], 'A_wo': _A_in['wo'], 'B_x': _B_in['x'], 'B_w1': _B_in['w1'], 'B_w2': _B_in['w2'], 'B_w3': _B_in['w3'], 'B_w4': _B_in['w4'], 'c': _w((lambda *s: torch.randn(*s, dtype=torch.bfloat16) * 0.1)(1, 512) * 8.0), 'w_mod': _w((lambda *s: torch.randn(*s, dtype=torch.bfloat16) * 0.1)(512, 6 * 512) * 512 ** (-0.5) * 8.0)}

def reference(A_x, A_wqkv, A_wo, B_x, B_w1, B_w2, B_w3, B_w4, c, w_mod):

    def _A_ref(x, wqkv, wo):
        B, S, D = x.shape
        H = 32
        Dh = D // H
        W, dil = (8, 2)
        qkv = (lambda x, *d: x.permute(*d))((x @ wqkv).reshape(B, S, 3, H, Dh), 2, 0, 3, 1, 4)
        q, k, v = (qkv[0], qkv[1], qkv[2])
        scale = Dh ** (-0.5)
        pos = torch.arange(S)
        off = torch.arange(W) * dil
        idx = pos[:, None] - off[None, :]
        mask = idx >= 0
        idx_c = torch.where(mask, idx, 0).reshape(-1)
        kg = k[:, :, idx_c, :].reshape(B, H, S, W, Dh)
        vg = v[:, :, idx_c, :].reshape(B, H, S, W, Dh)
        logits = torch.einsum('bhsd,bhswd->bhsw', q, kg) * scale
        logits = torch.where(mask[None, None, :, :], logits, -1000000000.0)
        attn = _softmax(logits, axis=-1)
        o = torch.einsum('bhsw,bhswd->bhsd', attn, vg)
        return (lambda x, *d: x.permute(*d))(o, 0, 2, 1, 3).reshape(B, S, D) @ wo

    def _B_ref(x, w1, w2, w3, w4):
        B, S, D = x.shape
        h = _gelu(_layernorm(x, axis=-1) @ w1)
        c = D // 4
        g0 = _pad(h[:, :, 0 * c:1 * c], ((0, 0), (1, 0), (0, 0)))[:, :S, :]
        g1 = _pad(h[:, :, 1 * c:2 * c], ((0, 0), (0, 1), (0, 0)))[:, 1:, :]
        g2 = _pad(h[:, :, 2 * c:3 * c], ((0, 0), (2, 0), (0, 0)))[:, :S, :]
        g3 = _pad(h[:, :, 3 * c:], ((0, 0), (0, 2), (0, 0)))[:, 2:, :]
        hs = torch.concatenate([g0, g1, g2, g3], axis=-1) @ w2
        x1 = x + hs
        h2 = _gelu(_layernorm(x1, axis=-1) @ w3) @ w4
        return x1 + h2
    x = A_x
    mod = (_silu(c) @ w_mod).reshape(c.shape[0], 6, 1, -1)
    sa, ca, ga, sb, cb, gb = (mod[:, 0].clone(), mod[:, 1].clone(), mod[:, 2].clone(), mod[:, 3].clone(), mod[:, 4].clone(), mod[:, 5].clone())
    h = _layernorm(x, axis=-1) * (1 + ca) + sa
    x = x + ga * _A_ref(h, A_wqkv, A_wo)
    h = _layernorm(x, axis=-1) * (1 + cb) + sb
    x = x + gb * _B_ref(h, B_w1, B_w2, B_w3, B_w4)
    return x
```

```python
import re

REG_RE = re.compile(r'\b([vsa])(\d+)\b|\b([vsa])\[(\d+):(\d+)\]|\b(vcc|exec|m0|scc)\b')

def regs_of(op):
    out = []
    for m in REG_RE.finditer(op):
        if m.group(1):
            out.append((m.group(1), int(m.group(2))))
        elif m.group(3):
            for r in range(int(m.group(4)), int(m.group(5)) + 1):
                out.append((m.group(3), r))
        else:
            out.append((m.group(6), 0))
    return out

TRANS = ('v_exp_f32', 'v_log_f32', 'v_rcp_f32', 'v_rsq_f32', 'v_sqrt_f32', 'v_sin_f32', 'v_cos_f32')

class Inst:
    __slots__ = ('text', 'op', 'kind', 'rd', 'wr', 'cond', 'cnt', 'passes', 'srcc', 'srcab', 'dpp', 'waits', 'wide', 'comment')
    def __init__(self, text, cond=None):
        self.text = text
        self.cond = cond
        self.waits = None
        self.cnt = None
        self.passes = 0
        self.srcc = set(); self.srcab = set()
        self.wide = set()
        t = text.split(';')[0].strip()
        parts = t.split(None, 1)
        self.op = op = parts[0]
        rest = parts[1] if len(parts) > 1 else ''
        ops = [o.strip() for o in re.split(r',(?![^\[]*\])', rest)] if rest else []
        self.dpp = ('_dpp' in op) or ('row_' in rest) or ('quad_perm' in rest)
        rd, wr = [], []
        if op.endswith(':') or op.startswith('.'):
            self.kind = 'label'
        elif op.startswith('v_mfma'):
            self.kind = 'mfma'
            wr = regs_of(ops[0]); rd = regs_of(ops[1]) + regs_of(ops[2]) + regs_of(ops[3])
            self.srcab = set(regs_of(ops[1]) + regs_of(ops[2])); self.srcc = set(regs_of(ops[3]))
            self.passes = 8 if '32x32' in op else 4
        elif op.startswith('v_'):
            self.kind = 'trans' if op in TRANS else 'valu'
            if op.startswith('v_permlane') and 'swap' in op:
                wr = regs_of(ops[0]) + regs_of(ops[1]); rd = list(wr)
            else:
                wr = regs_of(ops[0])
                for o in ops[1:]: rd += regs_of(o)
                if op.startswith(('v_fmac', 'v_dot2c', 'v_writelane')) or self.dpp: rd += regs_of(ops[0])
                if op.startswith(('v_add_co', 'v_sub_co', 'v_addc_co')):
                    wr += regs_of(ops[1])
                if op.startswith('v_cmpx'): wr.append(('exec', 0))
        elif op.startswith('ds_'):
            self.kind = 'ds'; self.cnt = 'lgkm'
            if op.startswith(('ds_read', 'ds_bpermute', 'ds_permute', 'ds_swizzle')):
                wr = regs_of(ops[0])
                for o in ops[1:]: rd += regs_of(o)
            else:
                for o in ops: rd += regs_of(o)
        elif op.startswith(('buffer_', 'global_')):
            self.kind = 'vmem'; self.cnt = 'vm'
            islds = bool(re.search(r'\blds\b', rest)) or '_lds_' in op
            if 'load' in op and not islds:
                wr = regs_of(ops[0])
                for o in ops[1:]: rd += regs_of(o)
            else:
                for o in ops: rd += regs_of(o)
                if islds: rd.append(('m0', 0))
                if 'store' in op and ('x4' in op or 'x3' in op):
                    d = ops[0] if op.startswith('buffer_') else ops[1]
                    self.wide = set(regs_of(d))
        elif op.startswith(('s_load', 's_memtime', 's_memrealtime', 's_buffer_load')):
            self.kind = 'smem'; self.cnt = 'smem'
            wr = regs_of(ops[0])
            for o in ops[1:]: rd += regs_of(o)
        elif op.startswith('s_'):
            self.kind = 'salu'
            if op.startswith(('s_cmp', 's_cbranch', 's_branch', 's_barrier', 's_waitcnt', 's_nop', 's_sleep', 's_setprio', 's_endpgm', 's_bitcmp')):
                for o in ops: rd += regs_of(o)
            else:
                wr = regs_of(ops[0]) if ops else []
                for o in ops[1:]: rd += regs_of(o)
                if 'saveexec' in op: wr.append(('exec', 0))
        else:
            raise ValueError('unknown instr: ' + text)
        self.rd = set(rd); self.wr = set(wr)

    def states(self):
        if self.kind == 'label': return 0
        if self.op == 's_nop': return int(self.text.split(';')[0].split()[1], 0) + 1
        return 1

class Wait:
    def __init__(self, toks, cond=None):
        self.toks = toks; self.cond = cond

class Drain:
    def __init__(self, vm, lgkm, cond=None):
        self.vm = vm; self.lgkm = lgkm; self.cond = cond

class Stream:
    def __init__(self):
        self.items = []
        self.cond = None
    def __call__(self, text):
        toks = []
        for line in text.strip().split('\n'):
            line = line.strip()
            if not line or line.startswith(';'): continue
            i = Inst(line, self.cond); self.items.append(i); toks.append(i)
        return toks[-1] if toks else None
    def wait(self, *toks):
        fl = []
        def rec(t):
            if t is None: return
            if isinstance(t, (list, tuple)):
                for x in t: rec(x)
            else: fl.append(t)
        rec(toks)
        if fl: self.items.append(Wait(fl, self.cond))
    def drain(self, vm=False, lgkm=False):
        self.items.append(Drain(vm, lgkm, self.cond))
    def label(self, name):
        self.items.append(Inst(name + ':', self.cond))
    def extend(self, other):
        self.items += other.items if isinstance(other, Stream) else other

def interleave(main, side, per=None, start=0, stop=None):
    mi = main.items; si = list(side.items)
    idx = [k for k, it in enumerate(mi) if isinstance(it, Inst) and it.kind == 'mfma']
    if stop is None: stop = len(idx)
    slots = idx[start:stop]
    n = len(slots)
    out = []
    real = [k for k, it in enumerate(si) if isinstance(it, Inst)]
    total = len(real)
    pos = 0
    done_real = 0
    slotset = {k: q for q, k in enumerate(slots)}
    for k, it in enumerate(mi):
        out.append(it)
        if k in slotset:
            q = slotset[k]
            target = (total * (q + 1) + n - 1) // n if per is None else min(total, per * (q + 1))
            while pos < len(si) and done_real < target:
                out.append(si[pos])
                if isinstance(si[pos], Inst): done_real += 1
                pos += 1
    out += si[pos:]
    s = Stream(); s.items = out
    return s

def resolve_waits(items):
    out = []
    q = {'vm': [], 'lgkm': []}
    smem_out = False
    for it in items:
        if isinstance(it, Inst):
            if it.cnt in ('vm', 'lgkm'): q[it.cnt].append(it)
            elif it.cnt == 'smem': smem_out = True
            out.append(it)
        elif isinstance(it, Drain):
            s = []
            if it.vm: s.append('vmcnt(0)')
            if it.lgkm: s.append('lgkmcnt(0)')
            out.append(Inst('s_waitcnt ' + ' '.join(s), it.cond))
            if it.cond is None:
                if it.vm: q['vm'] = []
                if it.lgkm: q['lgkm'] = []; smem_out = False
            else:
                if it.vm: q['vm'] = [x for x in q['vm'] if x.cond != it.cond]
                if it.lgkm: q['lgkm'] = [x for x in q['lgkm'] if x.cond != it.cond]
        else:
            s = []
            for c, mx, nm in (('vm', 63, 'vmcnt'), ('lgkm', 15, 'lgkmcnt')):
                pos = [q[c].index(t) for t in it.toks if t.cnt == c and t in q[c]]
                if not pos: continue
                p = max(pos)
                younger = [x for x in q[c][p + 1:] if x.cond is None or x.cond == it.cond]
                n = min(len(younger), mx)
                if c == 'lgkm' and smem_out: n = 0
                s.append(f'{nm}({n})')
                if it.cond is None:
                    q[c] = q[c][p + 1:]
                else:
                    q[c] = [x for k, x in enumerate(q[c]) if k > p or x.cond != it.cond]
            if s: out.append(Inst('s_waitcnt ' + ' '.join(s), it.cond))
    return out

def need(prod, cons):
    n = 0
    pv = prod.kind in ('valu', 'trans'); cv = cons.kind in ('valu', 'trans')
    vw = {r for r in prod.wr if r[0] in 'va' and len(r[0]) == 1}
    sw = {r for r in prod.wr if r[0] == 's' or r[0] == 'vcc'}
    if pv:
        if cons.kind == 'mfma' and vw & cons.rd: n = max(n, 2)
        if cv and cons.dpp and vw & cons.rd: n = max(n, 2)
        if cons.op.startswith('v_permlane') and vw & cons.rd: n = max(n, 2)
        if cons.op.startswith(('v_readlane', 'v_readfirstlane')) and vw & cons.rd: n = max(n, 1)
        if prod.kind == 'trans' and cv and vw & cons.rd: n = max(n, 1)
        if prod.kind == 'trans' and cons.kind in ('vmem', 'ds') and vw & cons.rd: n = max(n, 1)
        if sw & cons.rd:
            if cv: n = max(n, 4 if cons.op.startswith(('v_readlane', 'v_writelane')) else 2)
            if cons.kind == 'vmem': n = max(n, 5)
            if cons.kind == 'salu': n = max(n, 1)
        if ('exec', 0) in prod.wr:
            if cons.kind == 'mfma': n = max(n, 4)
            if cons.dpp: n = max(n, 5)
            if cons.op.startswith(('v_readlane', 'v_readfirstlane', 'v_writelane', 'v_permlane')): n = max(n, 4)
        if prod.op.startswith('v_dot') and vw & (cons.rd | cons.wr):
            if not (cons.op == prod.op): n = max(n, 3)
            else: n = max(n, 0)
        if ('op_sel' in prod.text or 'sdwa' in prod.text) and not prod.op.startswith('v_pk') and cv and vw & (cons.rd | cons.wr): n = max(n, 1)
    if prod.kind == 'mfma':
        big = {4: 8, 8: 12}[prod.passes]
        if cons.kind == 'mfma':
            if vw & cons.srcab: n = max(n, big)
            if vw & cons.srcc:
                if vw == cons.srcc and prod.passes == cons.passes: pass
                else: n = max(n, {4: 6, 8: 10}[prod.passes])
            elif vw & cons.wr: n = max(n, {4: 6, 8: 10}[prod.passes])
        elif cv:
            if vw & (cons.rd | cons.wr): n = max(n, big)
            if prod.srcc & cons.wr: n = max(n, {4: 3, 8: 7}[prod.passes])
        elif cons.kind in ('vmem', 'ds'):
            if vw & (cons.rd | cons.wr): n = max(n, big)
    if prod.kind == 'salu' and ('m0', 0) in prod.wr and ('m0', 0) in cons.rd: n = max(n, 1)
    if prod.wide and prod.wide & cons.wr: n = max(n, 2 if cv else 1)
    if prod.kind == 'salu' and ('exec', 0) in prod.wr and cons.dpp: n = max(n, 1)
    return n

def pad_hazards(items):
    out = []
    for it in items:
        if it.kind != 'label':
            dist = 0; req = 0
            for p in reversed(out):
                if dist >= 20: break
                if p.kind != 'label':
                    r = need(p, it) - dist
                    if r > req: req = r
                if p.cond is None or p.cond == it.cond: dist += p.states()
            while req > 0:
                k = min(req, 16)
                out.append(Inst(f's_nop {k-1}', it.cond)); req -= k
        out.append(it)
    return out

def finalize(stream):
    items = pad_hazards(resolve_waits(stream.items))
    lines = []
    for it in items:
        lines.append(it.text if it.kind == 'label' else '    ' + it.text)
    return '\n'.join(lines) + '\n'

class VAlloc:
    def __init__(self, lo, hi):
        self.free = [True] * (hi + 1)
        for i in range(lo): self.free[i] = False
        self.hi = hi; self.max = 0
    def alloc(self, n, align=None):
        if align is None: align = 1 if n == 1 else (2 if n < 4 else 4)
        for b in range(0, self.hi + 2 - n, align):
            if all(self.free[b:b + n]):
                for i in range(b, b + n): self.free[i] = False
                self.max = max(self.max, b + n)
                return b
        raise RuntimeError(f'out of VGPRs allocating {n}')
    def release(self, b, n):
        for i in range(b, b + n):
            assert not self.free[i], i
            self.free[i] = True

def v(b, n=1):
    return f'v{b}' if n == 1 else f'v[{b}:{b+n-1}]'
def s(b, n=1):
    return f's{b}' if n == 1 else f's[{b}:{b+n-1}]'
```

```python
import sys
from asmlib import *

NAME = 'adaLN_cond__sliding_local_dilated__mixer_s_mlp__prompt'
STAMPS = '--stamps' in sys.argv
STOP = None
for a in sys.argv:
    if a.startswith('--stop='): STOP = a.split('=')[1]

WS_EPOCH = 0
WS_PRES = 0x800
WS_MODG = 0x1000
WS_C3G = 0x4000
WS_FLAGS = 0x8000
WS_STC = 0x20000
WS_STE = 0x120000
WS_O = 0x200000
WS_XS = 0x400000
WS_H1 = 0x600000
WS_X1 = 0x800000
WS_U = 0xA00000
WS_DBG = 0x1200000
WS_SIZE = 0x1400000
L_XCH = 131072
L_MISC = 147456
L_SAEA = L_MISC
L_STX = L_MISC
L_BF = L_MISC + 4096
L_ONES = L_MISC + 8192
L_OWN = L_MISC + 9216
L_C3 = L_MISC + 10240
L_ABC = L_MISC + 11264
L_SILU = L_MISC + 13312
L_BRING = 81920
LDS_SIZE = 163840
S_ID, S_G, S_J, S_W, S_TAG = 2, 4, 5, 6, 7
SRD = dict(x=44, wqkv=48, wo=52, w1=56, w2=60, w3=64, w4=68, c=72, wmod=76, out=80, ws=84)
PTR = dict(x=16, wqkv=18, wo=20, w1=24, w2=26, w3=28, w4=30, c=32, wmod=34, out=36, ws=40)
SIZE = dict(x=2097152, wqkv=1572864, wo=524288, w1=524288, w2=524288, w3=1835008, w4=1835008, c=1024, wmod=3145728, out=2097152, ws=WS_SIZE)
def srd(n): return s(SRD[n], 4)
WS = srd('ws')
SPIN = 20000
SC = 'sc1'

_lbl = [0]
def newlabel(p='L'):
    _lbl[0] += 1
    return f'{p}_{_lbl[0]}'

stamp_idx = {'c': 0, 'h': 0}
stamp_names = {'c': [], 'h': []}
def stamp(e, who, name):
    if not STAMPS: return
    i = stamp_idx[who]; stamp_idx[who] += 1
    assert i < 26
    stamp_names[who].append(name)
    e('s_memtime s[96:97]')
    e.drain(lgkm=True)
    e(f's_mov_b32 s{16+i}, s96')

def dump_stamps(e, who):
    if not STAMPS: return
    e(f's_lshl_b32 s3, s{S_ID}, 3\n s_add_u32 s3, s3, s{S_W}\n s_lshl_b32 s3, s3, 7\n s_add_u32 s3, s3, {WS_DBG}')
    e('s_mov_b64 exec, 1')
    e('v_mov_b32 v2, 0')
    for i in range(stamp_idx[who]):
        e(f'v_mov_b32 v3, s{16+i}')
        e(f'buffer_store_dword v3, v2, {WS}, s3 offen offset:{4*i}')
    e('s_mov_b64 exec, -1')

def poll(e, loads, checks, first=None):
    ok = newlabel('Lok'); lp = newlabel('Lspin')
    def chk():
        e(f'v_cmp_ne_u32 vcc, s{S_TAG}, v{checks[0]}')
        for c in checks[1:]:
            e(f'v_cmp_ne_u32 s[8:9], s{S_TAG}, v{c}')
            e('s_or_b64 vcc, vcc, s[8:9]')
    if first is not None:
        e.wait(first)
        chk()
        e(f's_cmp_eq_u64 vcc, 0\n s_cbranch_scc1 {ok}')
        old = e.cond; e.cond = lp
    e(f's_mov_b32 s3, {SPIN}')
    e.label(lp)
    for l in loads: e(l)
    e.drain(vm=True)
    chk()
    e(f's_cmp_eq_u64 vcc, 0\n s_cbranch_scc1 {ok}')
    e('s_sub_u32 s3, s3, 1')
    e(f's_cbranch_scc0 {lp}')
    if first is not None: e.cond = old
    e.label(ok)

def set_flag(e, vtmp, soff_expr_reg):
    e('s_mov_b64 exec, 1')
    e(f'v_mov_b32 v{vtmp}, s{S_TAG}')
    t = e(f'buffer_store_dword v{vtmp}, off, {WS}, s{soff_expr_reg} {SC}')
    e('s_mov_b64 exec, -1')
    return t

def unpack(e, lo, hi, src):
    e(f'v_lshlrev_b32 v{lo}, 16, v{src}')
    e(f'v_and_b32 v{hi}, 0xffff0000, v{src}')

GC0 = -2.0 * 1.4426950408889634 * 0.7978845608028654
GC1 = GC0 * 0.044715
import struct
def f2u(x): return '0x%08x' % struct.unpack('<I', struct.pack('<f', x))[0]

def gelu_pack(e, z, n, out, tmp, sc):
    for p in range(0, n, 2):
        e(f'v_pk_mul_f32 {v(tmp+p,2)}, {v(z+p,2)}, {v(z+p,2)}')
    for p in range(0, n, 2):
        e(f'v_pk_mul_f32 {v(tmp+p,2)}, {v(tmp+p,2)}, {s(sc+2,2)}')
    for p in range(0, n, 2):
        e(f'v_pk_add_f32 {v(tmp+p,2)}, {v(tmp+p,2)}, {s(sc,2)}')
    for p in range(0, n, 2):
        e(f'v_pk_mul_f32 {v(tmp+p,2)}, {v(tmp+p,2)}, {v(z+p,2)}')
    for p in range(n):
        e(f'v_exp_f32 v{tmp+p}, v{tmp+p}')
    for p in range(0, n, 2):
        e(f'v_pk_add_f32 {v(tmp+p,2)}, {v(tmp+p,2)}, 1.0 op_sel_hi:[1,0]')
    for p in range(n):
        e(f'v_rcp_f32 v{tmp+p}, v{tmp+p}')
    for p in range(0, n, 2):
        e(f'v_pk_mul_f32 {v(tmp+p,2)}, {v(tmp+p,2)}, {v(z+p,2)}')
    for p in range(0, n, 2):
        e(f'v_cvt_pk_bf16_f32 v{out+p//2}, v{tmp+p}, v{tmp+p+1}')

def prologue():
    e = Stream()
    e(f'''
    s_cmp_ge_u32 s2, 256
    s_cbranch_scc1 L_exit
    s_load_dwordx16 s[16:31], s[0:1], 0
    s_load_dwordx8 s[32:39], s[0:1], 64
    s_load_dwordx2 s[40:41], s[0:1], 96
    s_memtime s[98:99]
    v_lshrrev_b32 v1, 6, v0
    v_and_b32 v0, 63, v0
    v_readfirstlane_b32 s{S_W}, v1
    s_and_b32 s{S_G}, s2, 7
    s_lshl_b32 s{S_G}, s{S_G}, 2
    s_lshr_b32 s3, s2, 6
    s_add_u32 s{S_G}, s{S_G}, s3
    s_lshr_b32 s{S_J}, s2, 3
    s_and_b32 s{S_J}, s{S_J}, 7
    v_lshlrev_b32 v1, 4, v0
    ''')
    e(f'''
    s_getpc_b64 s[8:9]
    s_lshl_b32 s3, s{S_W}, 13
    v_lshl_add_u32 v2, v0, 7, s3
    v_min_u32 v2, L_code_end-{NAME}_kernel-512, v2
    global_load_dword v250, v2, s[8:9]
    ''')
    e.drain(lgkm=True)
    for n in SRD:
        b = SRD[n]; p = PTR[n]
        e(f's_mov_b32 s{b}, s{p}\n s_and_b32 s{b+1}, s{p+1}, 0xffff\n s_mov_b32 s{b+2}, {SIZE[n]}\n s_mov_b32 s{b+3}, 0x20000')
    if STAMPS:
        e('s_mov_b32 s16, s98'); stamp_idx['c'] = 1; stamp_idx['h'] = 1; stamp_names['c'].append('start'); stamp_names['h'].append('start')
    skip = newlabel('LnoA')
    e(f's_cmp_ge_u32 s2, 76\n s_cbranch_scc1 {skip}')
    e.cond = 'A'
    e(f'''
    s_cmp_lt_u32 s2, 48
    s_cselect_b32 s88, s{SRD['wmod']}, s{SRD['w3']}
    s_cselect_b32 s89, s{SRD['wmod']+1}, s{SRD['w3']+1}
    s_cselect_b32 s90, s{SRD['wmod']+2}, s{SRD['w3']+2}
    s_mov_b32 s91, 0x20000
    s_movk_i32 s10, 3584
    s_cselect_b32 s10, 6144, s10
    s_cselect_b32 s11, 0, 48
    s_sub_u32 s11, s2, s11
    s_lshl_b32 s11, s11, 7
    v_lshrrev_b32 v4, 3, v0
    s_lshl_b32 s3, s{S_W}, 3
    v_add_u32 v4, s3, v4
    v_mul_lo_u32 v4, v4, s10
    v_lshrrev_b32 v5, 3, v0
    v_and_b32 v5, 2, v5
    s_and_b32 s3, s{S_W}, 1
    s_lshl_b32 s3, s3, 2
    v_or_b32 v5, s3, v5
    v_and_b32 v6, 7, v0
    v_xor_b32 v5, v5, v6
    v_lshl_add_u32 v4, v5, 4, v4
    s_lshl_b32 s10, s10, 6
    s_lshl_b32 s12, s{S_W}, 10
    ''')
    toks = []
    for i in range(8):
        e(f's_add_u32 m0, s12, {i*8192}')
        toks.append(e(f'buffer_load_dwordx4 v4, s[88:91], s11 offen lds'))
        if i < 7: e('s_add_u32 s11, s11, s10')
    e.cond = None
    e.label(skip)
    e(f's_cmp_ge_u32 s{S_W}, 4\n s_cbranch_scc1 L_helper')
    return e, toks

def helper(atoks):
    e = Stream()
    e.label('L_helper')
    A = VAlloc(2, 255)
    HW = 13
    e(f's_sub_u32 s{HW}, s{S_W}, 4')
    ep = A.alloc(2)
    tep = e(f'buffer_load_dword v{ep}, off, {WS}, 0 sc1')
    XH = A.alloc(160, 8)
    xo = A.alloc(5)
    rho = A.alloc(1); t0 = A.alloc(1); t1 = A.alloc(1); c16 = A.alloc(1)
    e(f'''
    s_mul_i32 s3, s{HW}, 20
    v_lshrrev_b32 v{rho}, 4, v0
    v_add_u32 v{rho}, s3, v{rho}
    v_and_b32 v{c16}, 15, v0
    s_lshl_b32 s8, s{S_G}, 6
    s_sub_u32 s8, s8, 16
    v_add_u32 v{t0}, s8, v{rho}
    v_lshlrev_b32 v{t0}, 10, v{t0}
    v_lshl_add_u32 v{xo}, v{c16}, 4, v{t0}
    ''')
    for i in range(1, 5): e(f'v_add_u32 v{xo+i}, {4096*i}, v{xo}')
    xt = {}
    for i in range(5):
        for q in range(4):
            b = XH + (i*4+q)*8
            xt[i, q] = e(f'buffer_load_dwordx4 {v(b+4,4)}, v{xo+i}, {srd("x")}, 0 offen offset:{256*q}')
    vb = A.alloc(1)
    e(f'''
    v_lshrrev_b32 v{t0}, 3, v0
    s_lshl_b32 s3, s{HW}, 3
    v_add_u32 v{vb}, s3, v{t0}
    v_mul_u32_u24 v{vb}, 3072, v{vb}
    v_and_b32 v{t0}, 2, v{t0}
    s_and_b32 s3, s{HW}, 1
    s_lshl_b32 s3, s3, 2
    v_or_b32 v{t0}, s3, v{t0}
    v_and_b32 v{t1}, 7, v0
    v_xor_b32 v{t0}, v{t0}, v{t1}
    v_lshl_add_u32 v{vb}, v{t0}, 4, v{vb}
    s_lshl_b32 s3, s{S_J}, 7
    v_add_u32 v{vb}, s3, v{vb}
    s_lshl_b32 s12, s{HW}, 10
    ''')
    btok = {}
    def bunit(sx):
        r = []
        for p in range(3):
            e(f's_add_u32 m0, s12, {L_BRING + (sx%5)*12288 + p*4096}')
            e(f's_mov_b32 s14, {sx*32*3072 + p*1024}')
            r.append(e(f'buffer_load_dwordx4 v{vb}, {srd("wqkv")}, s14 offen lds'))
        btok[sx] = r
    for sx in range(5): bunit(sx)
    skip = newlabel('LnoA')
    e(f's_cmp_ge_u32 s2, 76\n s_cbranch_scc1 {skip}')
    e.cond = 'A'
    e.wait(atoks)
    e('s_barrier')
    e.cond = None
    e.label(skip)
    e.wait(tep)
    e(f'''
    v_add_u32 v{ep}, 1, v{ep}
    s_getreg_b32 s3, hwreg(HW_REG_XCC_ID)
    v_mov_b32 v{ep+1}, s3
    v_readfirstlane_b32 s{S_TAG}, v{ep}
    s_lshl_b32 s3, s2, 3
    s_add_u32 s3, s3, {WS_PRES}
    s_mov_b64 exec, 1
    buffer_store_dwordx2 {v(ep,2)}, off, {WS}, s3 sc1
    s_mov_b64 exec, -1
    ''')
    vA = A.alloc(1); vW3 = A.alloc(1); vF3 = A.alloc(1); vG = A.alloc(1)
    e(f'''
    v_lshrrev_b32 v{t0}, 2, v0
    v_and_b32 v{t0}, 4, v{t0}
    v_and_b32 v{t1}, 7, v0
    v_xor_b32 v{t1}, v{t0}, v{t1}
    v_lshrrev_b32 v{t0}, 3, v0
    s_lshr_b32 s8, s{HW}, 1
    s_and_b32 s9, s{HW}, 1
    s_lshl_b32 s3, s8, 8
    s_lshl_b32 s10, s9, 6
    s_add_u32 s3, s3, s10
    v_add_u32 v{vW3}, s3, v{t0}
    v_lshlrev_b32 v{vA}, 10, v{vW3}
    v_lshl_add_u32 v{vA}, v{t1}, 4, v{vA}
    s_lshl_b32 s10, s{S_J}, 7
    v_add_u32 v{vA}, s10, v{vA}
    v_mul_u32_u24 v{vW3}, 3584, v{vW3}
    s_mul_i32 s11, s{S_J}, 448
    v_add_u32 v{vW3}, s11, v{vW3}
    v_mov_b32 v{vF3}, v{vW3}
    v_lshl_add_u32 v{vW3}, v{t1}, 4, v{vW3}
    ''')
    e(f'''
    s_mul_i32 s3, s8, 6
    v_xor_b32 v{vG}, s3, v{t1}
    v_lshrrev_b32 v{rho+0}, 2, v{vG}
    ''') if False else None
    tq = A.alloc(1)
    e(f'''
    s_mul_i32 s3, s8, 6
    v_xor_b32 v{tq}, s3, v{t1}
    v_and_b32 v{vG}, 3, v{tq}
    v_lshl_add_u32 v{vF3}, v{vG}, 4, v{vF3}
    v_lshrrev_b32 v{tq}, 2, v{tq}
    v_mul_u32_u24 v{tq}, {128*3584}, v{tq}
    v_add_u32 v{vF3}, v{tq}, v{vF3}
    v_add_u32 v{vF3}, 384, v{vF3}
    ''')
    e(f'''
    s_lshl_b32 s3, s8, 2
    s_add_u32 s3, s3, s9
    s_mul_i32 s3, s3, 224
    v_add_u32 v{vG}, s3, v{t0}
    v_lshlrev_b32 v{vG}, 10, v{vG}
    v_lshl_add_u32 v{vG}, v{t1}, 4, v{vG}
    v_add_u32 v{vG}, s10, v{vG}
    s_mul_i32 s15, s9, {224*1024}
    ''')
    sm = A.alloc(5); sq = A.alloc(5); ones = A.alloc(1)
    e(f'v_mov_b32 v{ones}, 0x3f803f80')
    for i in range(5):
        e(f'v_mov_b32 v{sm+i}, 0\n v_mov_b32 v{sq+i}, 0')
    for i in range(5):
        for q in range(4):
            e.wait(xt[i, q])
            b = XH + (i*4+q)*8 + 4
            for r in range(4):
                e(f'v_dot2_f32_bf16 v{sm+i}, v{b+r}, v{ones}, v{sm+i}')
                e(f'v_dot2_f32_bf16 v{sq+i}, v{b+r}, v{b+r}, v{sq+i}')
    for sh in (8, 4, 2, 1):
        for i in range(5):
            e(f'v_add_f32_dpp v{sm+i}, v{sm+i}, v{sm+i} row_ror:{sh} row_mask:0xf bank_mask:0xf')
            e(f'v_add_f32_dpp v{sq+i}, v{sq+i}, v{sq+i} row_ror:{sh} row_mask:0xf bank_mask:0xf')
    for i in range(5):
        e(f'v_mul_f32 v{sm+i}, {f2u(1/512)}, v{sm+i}')
        e(f'v_mul_f32 v{sq+i}, {f2u(1/512)}, v{sq+i}')
    for i in range(5):
        e(f'v_fma_f32 v{sq+i}, -v{sm+i}, v{sm+i}, v{sq+i}')
    for i in range(5):
        e(f'v_max_f32 v{sq+i}, 0, v{sq+i}')
        e(f'v_add_f32 v{sq+i}, {f2u(1e-5)}, v{sq+i}')
    for i in range(5):
        e(f'v_rsq_f32 v{sq+i}, v{sq+i}')
    for i in range(5):
        e(f'v_mul_f32 v{sm+i}, v{sm+i}, v{sq+i}')
    for i in range(5):
        for q in range(4):
            b = XH + (i*4+q)*8
            for r in range(4):
                unpack(e, b+2*r, b+2*r+1, b+4+r)
            for r in range(8):
                e(f'v_fma_f32 v{b+r}, v{b+r}, v{sq+i}, -v{sm+i}')
    ha = xo
    e(f'''
    v_lshrrev_b32 v{t0}, 2, v{c16}
    v_mul_u32_u24 v{t0}, 5120, v{t0}
    v_and_b32 v{t1}, 3, v{c16}
    v_lshl_add_u32 v{t0}, v{t1}, 8, v{t0}
    v_and_b32 v{t1}, 7, v{c16}
    ''')
    for i in range(5):
        e(f'''
        v_add_u32 v{tq}, {4*i}, v{rho}
        v_lshrrev_b32 v{ha+i}, 4, v{tq}
        v_lshl_add_u32 v{ha+i}, v{ha+i}, 10, v{t0}
        v_and_b32 v{tq}, 15, v{tq}
        v_xor_b32 v{tq}, v{tq}, v{t1}
        v_lshl_add_u32 v{ha+i}, v{tq}, 4, v{ha+i}
        ''')
    va = A.alloc(1)
    e(f'v_lshlrev_b32 v{va}, 5, v{c16}\n v_add_u32 v{va}, {L_SAEA}, v{va}')
    stamp(e, 'h', 'xhat')
    e('s_barrier')
    stamp(e, 'h', 'BM')
    ES = A.alloc(32, 4)
    est = {}
    def esload(q):
        b = ES + (q&1)*16
        est[q] = [e(f'ds_read_b128 {v(b,4)}, v{va} offset:{q*512}'), e(f'ds_read_b128 {v(b+4,4)}, v{va} offset:{q*512+16}'),
                  e(f'ds_read_b128 {v(b+8,4)}, v{va} offset:{2048+q*512}'), e(f'ds_read_b128 {v(b+12,4)}, v{va} offset:{2048+q*512+16}')]
    esload(0); esload(1)
    def piece(q, i):
        e.wait(est[q])
        b = XH + (i*4+q)*8; sa = ES + (q&1)*16; ea = sa + 8
        for p in range(0, 8, 2):
            e(f'v_pk_fma_f32 {v(b+p,2)}, {v(b+p,2)}, {v(ea+p,2)}, {v(sa+p,2)}')
        if i == 4 and q < 2: esload(q + 2)
        for p in range(4):
            e(f'v_cvt_pk_bf16_f32 v{b+p}, v{b+2*p}, v{b+2*p+1}')
        e(f'ds_write_b128 v{ha+i}, {v(b,4)} offset:{q*20480}')
    pieces = [(q, i) for q in range(4) for i in range(5)]
    for p in pieces[:5]: piece(*p)
    pieces = pieces[5:]
    for sx in range(17):
        if sx < 16: e.wait(btok[sx])
        e.drain(lgkm=True)
        e('s_barrier')
        if sx >= 1 and sx + 4 < 16: bunit(sx + 4)
        for p in pieces[:2]: piece(*p)
        pieces = pieces[2:]
    stamp(e, 'h', 'BBend')
    e(f's_lshl_b32 s12, s{HW}, 13')
    utok = {}
    def unit(u):
        r = []
        for n in range(8):
            e(f's_add_u32 m0, s12, {(u&3)*32768 + n*1024}')
            if u < 6:
                w = ('wo', 'w1', 'w2')[u//2]
                e(f's_mov_b32 s14, {(128*(u&1) + 8*n)*1024}')
                r.append(e(f'buffer_load_dwordx4 v{vA}, {srd(w)}, s14 offen lds'))
            elif u < 12:
                i = (u-6)//2
                e(f's_mov_b32 s14, {(128*(u&1) + 8*n)*3584 + 128*i}')
                r.append(e(f'buffer_load_dwordx4 v{vW3}, {srd("w3")}, s14 offen lds'))
            elif u == 12:
                e(f's_mov_b32 s14, {8*n*3584}')
                r.append(e(f'buffer_load_dwordx4 v{vF3}, {srd("w3")}, s14 offen lds'))
            elif u < 19:
                i = (u-13)//2; uh = (u-13) & 1
                e(f's_mov_b32 s14, {(448*uh + 64*i + 8*n)*1024}')
                r.append(e(f'buffer_load_dwordx4 v{vG}, {srd("w4")}, s14 offen lds'))
            else:
                e(f's_add_u32 s14, s15, {(224*(n>>2) + 192 + 8*(n&3))*1024}')
                r.append(e(f'buffer_load_dwordx4 v{vG}, {srd("w4")}, s14 offen lds'))
        utok[u] = r
    for u in range(4): unit(u)
    for u in range(20):
        e.wait(utok[u])
        if u == 2: e.wait(utok[3])
        e('s_barrier')
        if u >= 1 and u + 3 < 20: unit(u + 3)
    e('s_barrier')
    fin = newlabel('Lfin')
    e(f's_cmp_lg_u32 s2, 0\n s_cbranch_scc1 {fin}\n s_cmp_lg_u32 s{S_W}, 4\n s_cbranch_scc1 {fin}')
    e.cond = 'EP'
    P = XH
    e(f's_mov_b32 s14, {WS_PRES}')
    poll(e, [f'buffer_load_dwordx4 {v(P,4)}, v1, {WS}, s14 offen sc1', f'buffer_load_dwordx4 {v(P+4,4)}, v1, {WS}, s14 offen offset:1024 sc1'], [P, P+2, P+4, P+6])
    e('s_mov_b64 exec, 1')
    e(f'v_mov_b32 v{P}, s{S_TAG}')
    e(f'buffer_store_dword v{P}, off, {WS}, 0 sc1')
    e('s_mov_b64 exec, -1')
    e.cond = None
    e.label(fin)
    dump_stamps(e, 'h')
    e('s_endpgm')
    print('helper max vgpr', A.max, file=sys.stderr)
    return e

def compute(atoks):
    e = Stream()
    A = VAlloc(2, 255)
    S_M, S_KK, S_T = 13, 14, 15
    e(f'''
    s_lshr_b32 s{S_M}, s{S_W}, 1
    s_and_b32 s{S_KK}, s{S_W}, 1
    s_lshl_b32 s{S_T}, s{S_G}, 1
    s_add_u32 s{S_T}, s{S_T}, s{S_M}
    ''')
    t0 = A.alloc(1); t1 = A.alloc(1); t2 = A.alloc(1); t3 = A.alloc(1)
    ep = A.alloc(1)
    tep = e(f'buffer_load_dword v{ep}, off, {WS}, 0 sc1')
    cv = A.alloc(4)
    tc = e(f'buffer_load_dwordx4 {v(cv,4)}, v1, {srd("c")}, 0 offen')
    tok32 = A.alloc(1); hh = A.alloc(1); vrow = A.alloc(1)
    XR = A.alloc(8, 4)
    e(f'''
    v_and_b32 v{tok32}, 31, v0
    v_lshrrev_b32 v{hh}, 5, v0
    s_lshl_b32 s3, s{S_T}, 5
    v_add_u32 v{vrow}, s3, v{tok32}
    v_lshlrev_b32 v{vrow}, 10, v{vrow}
    v_lshl_add_u32 v{vrow}, v{hh}, 3, v{vrow}
    s_lshl_b32 s3, s{S_J}, 7
    s_lshl_b32 s8, s{S_KK}, 6
    s_add_u32 s3, s3, s8
    v_add_u32 v{vrow}, s3, v{vrow}
    ''')
    txr = [e(f'buffer_load_dwordx2 {v(XR+2*q,2)}, v{vrow}, {srd("x")}, 0 offen offset:{16*q}') for q in range(4)]
    a16 = A.alloc(1)
    e(f'''
    v_lshrrev_b32 v{t0}, 4, v0
    v_lshrrev_b32 v{t1}, 2, v0
    v_and_b32 v{t1}, 3, v{t1}
    v_lshl_add_u32 v{a16}, v{t0}, 3, v{t1}
    v_lshlrev_b32 v{a16}, 7, v{a16}
    v_and_b32 v{t1}, 2, v{t1}
    v_and_b32 v{t2}, 1, v{t0}
    v_lshl_or_b32 v{t1}, v{t2}, 2, v{t1}
    s_lshl_b32 s3, s{S_W}, 1
    v_xor_b32 v{t1}, s3, v{t1}
    v_lshl_add_u32 v{a16}, v{t1}, 4, v{a16}
    v_and_b32 v{t1}, 3, v0
    v_lshl_add_u32 v{a16}, v{t1}, 3, v{a16}
    ''')
    skip = newlabel('LnoA')
    e(f's_cmp_ge_u32 s2, 76\n s_cbranch_scc1 {skip}')
    e.cond = 'A'
    TA = A.alloc(16, 4)
    e.wait(tc)
    for r in range(4): unpack(e, TA+2*r, TA+2*r+1, cv+r)
    for r in range(8): e(f'v_mul_f32 v{TA+8+r}, {f2u(-1.4426950408889634)}, v{TA+r}')
    for r in range(8): e(f'v_exp_f32 v{TA+8+r}, v{TA+8+r}')
    for r in range(8): e(f'v_add_f32 v{TA+8+r}, 1.0, v{TA+8+r}')
    for r in range(8): e(f'v_rcp_f32 v{TA+8+r}, v{TA+8+r}')
    for r in range(8): e(f'v_mul_f32 v{TA+r}, v{TA+r}, v{TA+8+r}')
    for r in range(4): e(f'v_cvt_pk_bf16_f32 v{cv+r}, v{TA+2*r}, v{TA+2*r+1}')
    e('s_cmp_lt_u32 s2, 48\n s_cselect_b64 s[8:9], -1, 0')
    e(f'v_mov_b32 v{t0}, 0x3f803f80')
    for r in range(4): e(f'v_cndmask_b32 v{cv+r}, v{t0}, v{cv+r}, s[8:9]')
    e(f'v_add_u32 v{t0}, {L_SILU}, v1')
    e(f'ds_write_b128 v{t0}, {v(cv,4)}')
    e(f'v_lshrrev_b32 v{t0}, 4, v0\n v_lshlrev_b32 v{t0}, 4, v{t0}\n v_add_u32 v{t0}, {L_SILU}, v{t0}')
    SF = A.alloc(64, 4); WF = A.alloc(64, 4)
    e.drain(lgkm=True)
    st = []
    for b in range(16):
        st.append(e(f'ds_read_b128 {v(SF+4*b,4)}, v{t0} offset:{64*b}'))
        if b == 11: e.wait(st[3])
    e.wait(atoks)
    e.drain(lgkm=True)
    e('s_barrier')
    wt = []
    def rdA(b):
        wt.append([e(f'ds_read_b64_tr_b16 {v(WF+4*b,2)}, v{a16} offset:{4096*b}'), e(f'ds_read_b64_tr_b16 {v(WF+4*b+2,2)}, v{a16} offset:{4096*b+512}')])
    for b in range(6): rdA(b)
    for b in range(16):
        e.wait(wt[b])
        e(f'v_mfma_f32_16x16x32_bf16 {v(TA,4)}, {v(WF+4*b,4)}, {v(SF+4*b,4)}, {"0" if b==0 else v(TA,4)}')
        if b + 6 < 16: rdA(b + 6)
    e.wait(tep)
    e(f'v_add_u32 v{t3}, 1, v{ep}')
    e(f'''
    v_lshrrev_b32 v{t0}, 4, v0
    v_lshlrev_b32 v{t0}, 4, v{t0}
    s_mov_b32 s8, 0x00010001
    s_mov_b32 s9, 0x00010001
    s_mov_b64 exec, s[8:9]
    ''')
    lc3 = newlabel('Lc3'); ldone = newlabel('LAdone')
    e(f's_cmp_ge_u32 s2, 48\n s_cbranch_scc1 {lc3}')
    e(f'''
    v_cvt_pk_bf16_f32 v{TA+4}, v{TA}, v{TA+1}
    v_mov_b32 v{TA+5}, v{t3}
    v_cvt_pk_bf16_f32 v{TA+6}, v{TA+2}, v{TA+3}
    v_mov_b32 v{TA+7}, v{t3}
    s_lshl_b32 s3, s2, 8
    s_lshl_b32 s8, s{S_W}, 6
    s_add_u32 s3, s3, s8
    s_add_u32 s3, s3, {WS_MODG}
    buffer_store_dwordx4 {v(TA+4,4)}, v{t0}, {WS}, s3 offen sc1
    s_branch {ldone}
    ''')
    e.label(lc3)
    e(f'''
    s_nop 7
    v_mov_b32 v{TA+4}, v{TA}
    v_mov_b32 v{TA+5}, v{t3}
    v_mov_b32 v{TA+6}, v{TA+1}
    v_mov_b32 v{TA+7}, v{t3}
    v_mov_b32 v{TA+8}, v{TA+2}
    v_mov_b32 v{TA+9}, v{t3}
    v_mov_b32 v{TA+10}, v{TA+3}
    v_mov_b32 v{TA+11}, v{t3}
    v_lshlrev_b32 v{t0}, 1, v{t0}
    s_sub_u32 s3, s2, 48
    s_lshl_b32 s3, s3, 9
    s_lshl_b32 s8, s{S_W}, 7
    s_add_u32 s3, s3, s8
    s_add_u32 s3, s3, {WS_C3G}
    buffer_store_dwordx4 {v(TA+4,4)}, v{t0}, {WS}, s3 offen sc1
    buffer_store_dwordx4 {v(TA+8,4)}, v{t0}, {WS}, s3 offen offset:16 sc1
    ''')
    e.label(ldone)
    e('s_mov_b64 exec, -1\n s_nop 1')
    e.cond = None
    e.label(skip)
    A.release(SF, 64); A.release(WF, 64)
    stamp(e, 'c', 'Adone')
    e.wait(tep)
    e(f'v_add_u32 v{ep}, 1, v{ep}')
    e(f'v_readfirstlane_b32 s{S_TAG}, v{ep}')
    e(f's_lshl_b32 s10, s{S_W}, 10\n s_add_u32 s11, s10, {WS_MODG}')
    poll(e, [f'buffer_load_dwordx4 {v(cv,4)}, v1, {WS}, s11 offen sc1'], [cv+1, cv+3])
    unpack(e, TA, TA+1, cv); unpack(e, TA+2, TA+3, cv+2)
    e(f's_cmp_ge_u32 s{S_W}, 2\n s_cselect_b32 s3, 1.0, 0')
    for r in range(4): e(f'v_add_f32 v{TA+r}, s3, v{TA+r}')
    e(f'v_cvt_pk_bf16_f32 v{cv}, v{TA}, v{TA+1}\n v_cvt_pk_bf16_f32 v{cv+2}, v{TA+2}, v{TA+3}')
    unpack(e, TA, TA+1, cv); unpack(e, TA+2, TA+3, cv+2)
    e(f's_add_u32 s3, s10, {L_SAEA}\n v_add_u32 v{t0}, s3, v1')
    e(f'ds_write_b128 v{t0}, {v(TA,4)}')
    e.drain(lgkm=True)
    stamp(e, 'c', 'modgot')
    e('s_barrier')
    A.release(TA, 16); A.release(cv, 4)
    GV = A.alloc(8, 4); GC = A.alloc(2); vc3 = A.alloc(1)
    e(f'''
    s_lshl_b32 s10, s{S_W}, 11
    s_add_u32 s92, s10, {WS_MODG + 4096}
    s_mul_i32 s3, s{S_J}, 224
    s_mul_i32 s8, s{S_W}, 56
    s_add_u32 s3, s3, s8
    s_lshl_b32 s3, s3, 3
    s_add_u32 s93, s3, {WS_C3G}
    v_min_u32 v{vc3}, 55, v0
    v_lshlrev_b32 v{vc3}, 3, v{vc3}
    ''')
    gl = [f'buffer_load_dwordx4 {v(GV,4)}, v1, {WS}, s92 offen sc1', f'buffer_load_dwordx4 {v(GV+4,4)}, v1, {WS}, s92 offen offset:1024 sc1',
          f'buffer_load_dwordx2 {v(GC,2)}, v{vc3}, {WS}, s93 offen sc1']
    gtok = [e(x) for x in gl]
    hE = A.alloc(1); hO = A.alloc(1)
    e(f'''
    v_lshrrev_b32 v{t0}, 4, v0
    v_and_b32 v{t1}, 15, v0
    v_xor_b32 v{t1}, v{t1}, v{t0}
    v_lshlrev_b32 v{hE}, 8, v{t0}
    v_lshl_add_u32 v{hE}, v{t1}, 4, v{hE}
    v_xor_b32 v{hO}, 64, v{hE}
    v_add_u32 v{a16}, {L_BRING}, v{a16}
    ''')
    AQ = A.alloc(16, 4); AK = A.alloc(20, 4); AV = A.alloc(20, 4)
    FB = A.alloc(64, 4)
    rt = {}
    def breads(sx):
        b = FB + (sx & 1) * 32
        if sx == 8: e(f'v_add_u32 v{hE}, 40960, v{hE}\n v_add_u32 v{hO}, 40960, v{hO}')
        ha = hO if sx & 1 else hE
        r = []
        for p in range(3):
            o = (sx % 5) * 12288 + p * 4096
            r.append(e(f'ds_read_b64_tr_b16 {v(b+20+4*p,2)}, v{a16} offset:{o}'))
            r.append(e(f'ds_read_b64_tr_b16 {v(b+22+4*p,2)}, v{a16} offset:{o+512}'))
        for t in range(5):
            r.append(e(f'ds_read_b128 {v(b+4*t,4)}, v{ha} offset:{(sx&7)*5120 + t*1024}'))
        rt[sx] = r
    def bmfma(sx):
        b = FB + (sx & 1) * 32
        z = sx == 0
        for t in range(5):
            e(f'v_mfma_f32_16x16x32_bf16 {v(AK+4*t,4)}, {v(b+24,4)}, {v(b+4*t,4)}, {"0" if z else v(AK+4*t,4)}')
            e(f'v_mfma_f32_16x16x32_bf16 {v(AV+4*t,4)}, {v(b+4*t,4)}, {v(b+28,4)}, {"0" if z else v(AV+4*t,4)}')
            if t > 0:
                e(f'v_mfma_f32_16x16x32_bf16 {v(AQ+4*t-4,4)}, {v(b+20,4)}, {v(b+4*t,4)}, {"0" if z else v(AQ+4*t-4,4)}')
    for sx in range(17):
        e('s_barrier')
        if sx == 0: stamp(e, 'c', 'BB0')
        if sx < 16: breads(sx)
        if sx > 0: bmfma(sx - 1)
        if sx < 16: e.drain(lgkm=True)
    stamp(e, 'c', 'Bgemm')
    A.release(FB, 64)
    QP = A.alloc(8, 2); KP = A.alloc(10, 2); VP = A.alloc(10, 2)
    sel = A.alloc(4)
    e(f'''
    v_and_b32 v{t0}, 15, v0
    v_and_b32 v{t1}, 1, v0
    v_cmp_eq_u32 s[88:89], 1, v{t1}
    v_lshrrev_b32 v{t2}, 4, v0
    v_lshl_add_u32 v{t2}, v{t2}, 2, v{t1}
    v_cmp_le_u32 s[90:91], v{t2}, v{t0}
    v_add_u32 v{t2}, 2, v{t2}
    v_cmp_le_u32 s[94:95], v{t2}, v{t0}
    v_mov_b32 v{t0}, 0x0c0c0100
    v_mov_b32 v{t1}, 0x01000c0c
    v_cndmask_b32 v{t0}, v{t0}, v{t1}, s[88:89]
    v_mov_b32 v{t2}, 0x0c0c0302
    v_mov_b32 v{t1}, 0x03020c0c
    v_cndmask_b32 v{t2}, v{t2}, v{t1}, s[88:89]
    v_mov_b32 v{t1}, 0x0c0c0c0c
    v_cndmask_b32 v{sel+0}, v{t0}, v{t1}, s[90:91]
    v_cndmask_b32 v{sel+1}, v{t2}, v{t1}, s[94:95]
    v_cndmask_b32 v{sel+2}, v{t1}, v{t0}, s[90:91]
    v_cndmask_b32 v{sel+3}, v{t1}, v{t2}, s[94:95]
    s_cmp_eq_u32 s{S_G}, 0
    s_cselect_b32 s12, {f2u(-1e30)}, 0
    ''')
    for t in range(5):
        e(f'v_cvt_pk_bf16_f32 v{KP+2*t}, v{AK+4*t}, v{AK+4*t+1}\n v_cvt_pk_bf16_f32 v{KP+2*t+1}, v{AK+4*t+2}, v{AK+4*t+3}')
        if t > 0:
            e(f'v_cvt_pk_bf16_f32 v{QP+2*t-2}, v{AQ+4*t-4}, v{AQ+4*t-3}\n v_cvt_pk_bf16_f32 v{QP+2*t-1}, v{AQ+4*t-2}, v{AQ+4*t-1}')
    S0 = A.alloc(16, 4); S1 = A.alloc(16, 4)
    for t in range(4):
        e(f'v_mfma_f32_16x16x16_bf16 {v(S0+4*t,4)}, {v(KP+2*t,2)}, {v(QP+2*t,2)}, 0')
        e(f'v_mfma_f32_16x16x16_bf16 {v(S1+4*t,4)}, {v(KP+2*t+2,2)}, {v(QP+2*t,2)}, 0')
    for t in range(5):
        e(f'v_cvt_pk_bf16_f32 v{VP+2*t}, v{AV+4*t}, v{AV+4*t+1}\n v_cvt_pk_bf16_f32 v{VP+2*t+1}, v{AV+4*t+2}, v{AV+4*t+3}')
    LA = A.alloc(4); LB = A.alloc(4); MX = A.alloc(4); MY = A.alloc(4)
    for t in range(4):
        a = S0 + 4*t; b = S1 + 4*t
        e(f'''
        v_cndmask_b32 v{a}, v{a}, v{a+1}, s[88:89]
        v_cndmask_b32 v{a+2}, v{a+2}, v{a+3}, s[88:89]
        v_cndmask_b32 v{b}, v{b}, v{b+1}, s[88:89]
        v_cndmask_b32 v{b+2}, v{b+2}, v{b+3}, s[88:89]
        ''')
        if t == 0:
            e(f'v_add_f32 v{a}, s12, v{a}\n v_add_f32 v{a+2}, s12, v{a+2}')
        e(f'''
        v_cndmask_b32 v{LA+t}, v{a}, v{b}, s[90:91]
        v_cndmask_b32 v{LB+t}, v{a+2}, v{b+2}, s[94:95]
        v_max_f32 v{MX+t}, v{LA+t}, v{LB+t}
        ''')
    def xreduce(X, Y, op):
        for sw in ('v_permlane16_swap_b32', 'v_permlane32_swap_b32'):
            for t in range(4): e(f'v_mov_b32 v{Y+t}, v{X+t}')
            for t in range(4): e(f'{sw} v{X+t}, v{Y+t}')
            for t in range(4): e(f'{op} v{X+t}, v{X+t}, v{Y+t}')
    xreduce(MX, MY, 'v_max_f32')
    kq = f2u(0.25 * 1.4426950408889634)
    for t in range(4):
        e(f'v_sub_f32 v{LA+t}, v{LA+t}, v{MX+t}\n v_sub_f32 v{LB+t}, v{LB+t}, v{MX+t}')
    for t in range(4):
        e(f'v_mul_f32 v{LA+t}, {kq}, v{LA+t}\n v_mul_f32 v{LB+t}, {kq}, v{LB+t}')
    for t in range(4):
        e(f'v_exp_f32 v{LA+t}, v{LA+t}\n v_exp_f32 v{LB+t}, v{LB+t}')
    for t in range(4):
        e(f'v_add_f32 v{MX+t}, v{LA+t}, v{LB+t}')
    xreduce(MX, MY, 'v_add_f32')
    for t in range(4): e(f'v_rcp_f32 v{MX+t}, v{MX+t}')
    for t in range(4):
        e(f'v_mul_f32 v{LA+t}, v{LA+t}, v{MX+t}\n v_mul_f32 v{LB+t}, v{LB+t}, v{MX+t}')
    for t in range(4):
        e(f'v_cvt_pk_bf16_f32 v{MY+t}, v{LA+t}, v{LB+t}')
    for t in range(4):
        for r in range(4):
            e(f'v_perm_b32 v{S0+4*t+r}, v{MY+t}, v{MY+t}, v{sel+r}')
    for t in range(4):
        e(f'v_mfma_f32_16x16x32_bf16 {v(S1+4*t,4)}, {v(VP+2*t,4)}, {v(S0+4*t,4)}, 0')
    OP = AQ
    e(f'''
    s_lshl_b32 s3, s{S_G}, 16
    s_lshl_b32 s8, s{S_J}, 12
    s_add_u32 s3, s3, s8
    s_lshl_b32 s8, s{S_W}, 10
    s_add_u32 s3, s3, s8
    s_add_u32 s10, s3, {WS_O}
    s_add_u32 s11, s10, 32768
    ''')
    for t in range(4):
        e(f'v_cvt_pk_bf16_f32 v{OP+2*t}, v{S1+4*t}, v{S1+4*t+1}\n v_cvt_pk_bf16_f32 v{OP+2*t+1}, v{S1+4*t+2}, v{S1+4*t+3}')
    stt = []
    for m in range(2):
        e(f'v_permlane16_swap_b32 v{OP+4*m}, v{OP+4*m+2}\n v_permlane16_swap_b32 v{OP+4*m+1}, v{OP+4*m+3}')
        stt.append(e(f'buffer_store_dwordx4 {v(OP+4*m,4)}, v1, {WS}, s{10+m} offen {SC}'))
    e(f'''
    s_lshl_b32 s3, s{S_G}, 8
    s_lshl_b32 s8, s{S_J}, 4
    s_add_u32 s3, s3, s8
    s_lshl_b32 s8, s{S_W}, 2
    s_add_u32 s3, s3, s8
    s_add_u32 s10, s3, {WS_FLAGS}
    ''')
    e.wait(stt)
    set_flag(e, t0, 10)
    stamp(e, 'c', 'attn')
    for b, n in ((QP, 8), (KP, 10), (VP, 10), (sel, 4), (S0, 16), (S1, 16), (LA, 4), (LB, 4), (MX, 4), (MY, 4), (AQ, 16), (AK, 20), (AV, 20), (hE, 1), (hO, 1), (a16, 1)):
        A.release(b, n)
    poll(e, gl, [GV+1, GV+3, GV+5, GV+7, GC+1], first=gtok)
    TA = A.alloc(8, 4)
    for h2 in range(2):
        unpack(e, TA+4*h2, TA+4*h2+1, GV+4*h2); unpack(e, TA+4*h2+2, TA+4*h2+3, GV+4*h2+2)
    e(f's_cmp_eq_u32 s{S_W}, 2\n s_cselect_b32 s3, 1.0, 0')
    for r in range(8): e(f'v_add_f32 v{TA+r}, s3, v{TA+r}')
    for r in range(4): e(f'v_cvt_pk_bf16_f32 v{GV+r}, v{TA+2*r}, v{TA+2*r+1}')
    for r in range(4): unpack(e, TA+2*r, TA+2*r+1, GV+r)
    e(f'''
    s_lshl_b32 s3, s{S_W}, 10
    s_add_u32 s3, s3, {L_BF}
    v_lshl_add_u32 v{t0}, v0, 3, s3
    ds_write_b64 v{t0}, {v(GV,2)}
    ds_write_b64 v{t0}, {v(GV+2,2)} offset:512
    v_mov_b32 v{GV+4}, 0x3f803f80
    v_lshl_add_u32 v{t0}, v0, 2, 0
    s_lshl_b32 s3, s{S_W}, 8
    s_add_u32 s3, s3, {L_ONES}
    v_add_u32 v{t0}, s3, v{t0}
    ds_write_b32 v{t0}, v{GV+4}
    s_mul_i32 s3, s{S_W}, 224
    s_add_u32 s3, s3, {L_C3}
    v_lshrrev_b32 v{t0}, 1, v{vc3}
    v_add_u32 v{t0}, s3, v{t0}
    ds_write_b32 v{t0}, v{GC}
    ''')
    e(f'''
    s_cmp_ge_u32 s{S_J}, 4
    s_cselect_b64 s[8:9], -1, 0
    v_cndmask_b32 v{TA}, v{TA}, v{TA+4}, s[8:9]
    v_cndmask_b32 v{TA+1}, v{TA+1}, v{TA+5}, s[8:9]
    v_cndmask_b32 v{TA+2}, v{TA+2}, v{TA+6}, s[8:9]
    v_cndmask_b32 v{TA+3}, v{TA+3}, v{TA+7}, s[8:9]
    v_and_b32 v{t0}, 15, v0
    s_lshl_b32 s3, s{S_W}, 8
    s_add_u32 s3, s3, {L_OWN}
    v_lshl_add_u32 v{t0}, v{t0}, 4, s3
    s_and_b32 s3, s{S_J}, 3
    s_lshl_b32 s3, s3, 4
    s_mov_b64 s[8:9], 0xffff
    s_lshl_b64 s[8:9], s[8:9], s3
    s_mov_b64 exec, s[8:9]
    ds_write_b128 v{t0}, {v(TA,4)}
    s_mov_b64 exec, -1
    ''')
    A.release(TA, 8); A.release(GV, 8); A.release(GC, 2); A.release(vc3, 1)
    aP = A.alloc(4); aN = A.alloc(2)
    e(f'''
    v_lshrrev_b32 v{t0}, 2, v0
    v_and_b32 v{t0}, 3, v{t0}
    v_lshrrev_b32 v{t1}, 1, v{t0}
    v_xor_b32 v{t1}, s{S_KK}, v{t1}
    v_lshlrev_b32 v{t1}, 6, v{t1}
    v_lshl_add_u32 v{t1}, v{t0}, 7, v{t1}
    v_lshrrev_b32 v{t0}, 4, v0
    v_and_b32 v{t0}, 1, v{t0}
    v_lshl_add_u32 v{t1}, v{t0}, 5, v{t1}
    v_and_b32 v{t0}, 3, v0
    v_lshl_add_u32 v{t1}, v{t0}, 3, v{t1}
    s_lshl_b32 s3, s{S_KK}, 14
    v_add_u32 v{t1}, s3, v{t1}
    v_lshl_add_u32 v{aP}, v{hh}, 9, v{t1}
    v_xor_b32 v{aP+1}, 64, v{aP}
    v_add_u32 v{aP+2}, 0x10000, v{aP}
    v_add_u32 v{aP+3}, 0x10000, v{aP+1}
    v_lshl_add_u32 v{aN}, v{hh}, 10, v{t1}
    v_xor_b32 v{aN+1}, 64, v{aN}
    ''')
    xw = A.alloc(1); xr = A.alloc(1); vcol = A.alloc(1); vfl = A.alloc(1)
    e(f'''
    s_lshl_b32 s3, s{S_W}, 12
    s_add_u32 s3, s3, {L_XCH}
    v_add_u32 v{xw}, s3, v1
    v_xor_b32 v{xr}, 4096, v{xw}
    s_lshl_b32 s3, s{S_KK}, 7
    v_lshl_add_u32 v{vcol}, v{hh}, 4, s3
    v_add_u32 v{vcol}, {L_MISC}, v{vcol}
    s_mov_b32 s88, {f2u(GC0)}
    s_mov_b32 s89, {f2u(GC0)}
    s_mov_b32 s90, {f2u(GC1)}
    s_mov_b32 s91, {f2u(GC1)}
    ''')
    ACT = A.alloc(64, 4); WB = A.alloc(32, 4); AC = A.alloc(32, 4)
    X2 = A.alloc(16, 4); HX = A.alloc(16, 4)
    RC = A.alloc(16, 4); T1 = A.alloc(32, 4); T2 = T1 + 16; PK = A.alloc(8, 4)
    e.wait(txr)
    for r in range(8): unpack(e, X2+2*r, X2+2*r+1, XR+r)
    A.release(XR, 8)

    def colvec(dst, off, n=4):
        return [e(f'ds_read_b128 {v(dst+4*q,4)}, v{vcol} offset:{off - L_MISC + 32*q}') for q in range(n)]

    class G:
        pass
    def wread(f, u, sl, n, natural):
        b = WB + 4 * (f % 8)
        slot = u & 3
        if natural:
            a = aN + n; o = slot * 32768 + sl * 2048; o2 = o + 512
        else:
            a = aP + n + (2 if slot >= 2 else 0); o = (slot & 1) * 32768 + sl * 2048; o2 = o + 1024
        return [e(f'ds_read_b64_tr_b16 {v(b,2)}, v{a} offset:{o}'), e(f'ds_read_b64_tr_b16 {v(b+2,2)}, v{a} offset:{o2}')]

    def gemm(units, natural, pre, acts, zero=True, f3=False, mid=None):
        fr = [(u, sl, n) for u in units for sl in range(8) for n in range(2)]
        N = len(fr); tk = {}; issued = 0
        def issue(limit):
            nonlocal issued
            while issued < min(limit, N):
                tk[issued] = wread(issued, *fr[issued], natural); issued += 1
        issue(7)
        pre()
        bar_done = 1
        for f in range(N):
            u, sl, n = fr[f]
            ui = f // 16
            reg, at = acts(ui, sl, n)
            e.wait(tk[f], at)
            acc = AC if f3 else AC + 16 * n
            first = zero and (f == 0 if f3 else f < 2)
            e(f'v_mfma_f32_32x32x16_bf16 {v(acc,16)}, {v(WB+4*(f%8),4)}, {v(reg,4)}, {"0" if first else v(acc,16)}')
            if mid: mid(f)
            lim = f + 8
            ub = bar_done * 16
            if lim > ub and bar_done < len(units):
                if f % 16 == 11:
                    e.drain(lgkm=True)
                    e('s_barrier')
                    bar_done += 1
                else:
                    lim = ub
            issue(min(lim, issued + 2))

    def load_acts(base_sreg, n, dst, voff=None, tmp=10):
        r = []
        for f in range(n):
            if f % 4 == 0: e(f's_add_u32 s{tmp}, s{base_sreg}, {f*1024}')
            vo = 1 if voff is None else voff(f)
            r.append(e(f'buffer_load_dwordx4 {v(dst+4*f,4)}, v{vo}, {WS}, s{tmp} offen offset:{(f%4)*1024} {SC}'))
        return r

    def exchange(extra_w=None, extra_r=None):
        for q in range(4): e(f'ds_write_b128 v{xw}, {v(AC+16+4*q,4)} offset:{q*1024}')
        if extra_w: extra_w()
        e.drain(lgkm=True)
        e('s_barrier')
        r = [e(f'ds_read_b128 {v(RC+4*q,4)}, v{xr} offset:{q*1024}') for q in range(4)]
        if extra_r: extra_r()
        return r

    def flag_addr(dst, fset):
        e(f'''
        s_lshl_b32 s3, s{S_T}, 7
        s_lshl_b32 s8, s{S_J}, 3
        s_add_u32 s3, s3, s8
        s_lshl_b32 s8, s{S_KK}, 2
        s_add_u32 s3, s3, s8
        s_add_u32 s{dst}, s3, {WS_FLAGS + fset*8192}
        ''')
    def act_base(dst, buf):
        e(f's_lshl_b32 s3, s{S_T}, 15\n s_lshl_b32 s8, s{S_KK}, 14\n s_add_u32 s3, s3, s8\n s_add_u32 s{dst}, s3, {buf}')
    def out_base(dst, buf):
        e(f's_lshl_b32 s3, s{S_T}, 15\n s_lshl_b32 s8, s{S_J}, 12\n s_add_u32 s3, s3, s8\n s_lshl_b32 s8, s{S_KK}, 11\n s_add_u32 s3, s3, s8\n s_add_u32 s{dst}, s3, {buf}')
    def poll8(fset):
        e(f'''
        v_and_b32 v{vfl}, 7, v0
        v_lshlrev_b32 v{vfl}, 2, v{vfl}
        s_lshl_b32 s3, s{S_T}, 7
        s_lshl_b32 s8, s{S_KK}, 5
        s_add_u32 s3, s3, s8
        s_add_u32 s11, s3, {WS_FLAGS + fset*8192}
        ''')
        poll(e, [f'buffer_load_dword v{t0}, v{vfl}, {WS}, s11 offen sc1'], [t0])

    at = {}
    std_acts = lambda ui, sl, n: (ACT + 4 * (ui * 8 + sl), at['t'][ui * 8 + sl])
    e.drain(lgkm=True)
    e('s_barrier')
    def preC():
        e(f'''
        v_and_b32 v{vfl}, 15, v0
        v_lshlrev_b32 v{vfl}, 2, v{vfl}
        s_lshl_b32 s3, s{S_G}, 8
        s_lshl_b32 s8, s{S_KK}, 6
        s_add_u32 s3, s3, s8
        s_add_u32 s11, s3, {WS_FLAGS}
        ''')
        act_base(12, WS_O)
        poll(e, [f'buffer_load_dword v{t0}, v{vfl}, {WS}, s11 offen sc1'], [t0])
        stamp(e, 'c', 'Cpoll')
        at['t'] = load_acts(12, 16, ACT)
    gemm([0, 1], True, preC, std_acts)
    stamp(e, 'c', 'Cgemm')
    cga = colvec(T1, L_OWN + 0); ceb = colvec(T2, L_OWN + 512)
    out_base(12, WS_XS)
    rc = exchange()
    PX = HX
    for q in range(4):
        e.wait(rc[q])
        for p in (4*q, 4*q+2):
            e(f'v_pk_add_f32 {v(AC+p,2)}, {v(AC+p,2)}, {v(RC+p,2)}')
            e(f'v_pk_fma_f32 {v(X2+p,2)}, {v(AC+p,2)}, {v(T1+p,2)}, {v(X2+p,2)}')
            e(f'v_cvt_pk_bf16_f32 v{PX+p//2}, v{X2+p}, v{X2+p+1}')
            unpack(e, X2+p, X2+p+1, PX+p//2)
            e(f'v_pk_mul_f32 {v(RC+p,2)}, {v(X2+p,2)}, {v(T2+p,2)}')
            e(f'v_cvt_pk_bf16_f32 v{PK+p//2}, v{RC+p}, v{RC+p+1}')
    stt = [e(f'buffer_store_dwordx4 {v(PK+4*f,4)}, v1, {WS}, s12 offen offset:{1024*f} {SC}') for f in range(2)]
    csb = colvec(T1, L_OWN + 256)
    flag_addr(10, 1)
    ST = A.alloc(12, 4); one = A.alloc(1)
    e(f'v_mov_b32 v{one}, 0x3f803f80')
    e.wait(csb)
    for p in range(8):
        e(f'v_cvt_pk_bf16_f32 v{RC+p}, v{T2+2*p}, v{T2+2*p+1}')
        e(f'v_cvt_pk_bf16_f32 v{RC+8+p}, v{T1+2*p}, v{T1+2*p+1}')
    e.wait(stt)
    set_flag(e, t0, 10)
    stamp(e, 'c', 'Cpub')
    S = [ST, ST+1, ST+2, ST+4, ST+5, ST+6]
    for p in range(8):
        srcs = [(PX+p, one), (PX+p, PX+p), (PK+p, one), (PK+p, PK+p), (PK+p, RC+p), (PK+p, RC+8+p)]
        for k in range(6):
            e(f'v_dot2_f32_bf16 v{S[k]}, v{srcs[k][0]}, v{srcs[k][1]}, {"0" if p==0 else "v%d"%S[k]}')
    for k in range(3): e(f'v_permlane32_swap_b32 v{ST+k}, v{ST+4+k}')
    for k in range(3): e(f'v_add_f32 v{ST+k}, v{ST+k}, v{ST+4+k}')
    e(f'''
    v_mov_b32 v{ST+3}, s{S_TAG}
    s_lshl_b32 s3, s{S_T}, 14
    s_lshl_b32 s8, s{S_J}, 11
    s_add_u32 s3, s3, s8
    s_lshl_b32 s8, s{S_KK}, 10
    s_add_u32 s3, s3, s8
    s_add_u32 s10, s3, {WS_STC}
    buffer_store_dwordx4 {v(ST,4)}, v1, {WS}, s10 offen {SC}
    ''')
    sp = A.alloc(1)
    e(f'''
    v_mov_b32 v{sp}, {L_BF + 1024}
    v_mov_b32 v{t0}, {L_BF + 2048}
    v_cmp_eq_u32 vcc, 1, v{tok32}
    v_cndmask_b32 v{sp}, v{sp}, v{t0}, vcc
    v_mov_b32 v{t0}, {L_ONES}
    v_cmp_eq_u32 vcc, 0, v{tok32}
    v_cndmask_b32 v{sp}, v{sp}, v{t0}, vcc
    s_lshl_b32 s3, s{S_KK}, 9
    v_add_u32 v{sp}, s3, v{sp}
    v_lshl_add_u32 v{sp}, v{hh}, 3, v{sp}
    s_lshl_b32 s3, s{S_M}, 6
    v_xor_b32 v{t1}, s3, v{aP+2}
    ''')
    tk = {}
    def sprd(k):
        o = (k // 8) * 32768 + (k % 8) * 2048
        b = WB + 4 * (k % 8)
        tk[k] = [e(f'ds_read_b64_tr_b16 {v(b,2)}, v{t1} offset:{o}'), e(f'ds_read_b64_tr_b16 {v(b+2,2)}, v{t1} offset:{o+1024}'),
                 e(f'ds_read_b64 {v(ACT+4*k,2)}, v{sp} offset:{32*k}'), e(f'ds_read_b64 {v(ACT+4*k+2,2)}, v{sp} offset:{32*k+16}')]
    for k in range(3): sprd(k)
    for k in range(16):
        e.wait(tk[k])
        e(f'v_mfma_f32_32x32x16_bf16 {v(AC,16)}, {v(WB+4*(k%8),4)}, {v(ACT+4*k,4)}, {"0" if k==0 else v(AC,16)}')
        if k + 3 < 16: sprd(k + 3)
    e(f'v_add_u32 v{t0}, {L_BF}, v1')
    r1 = e(f'ds_read_b128 {v(T1,4)}, v{t0} offset:2048')
    r2 = e(f'ds_read_b128 {v(T1+4,4)}, v{t0} offset:1024')
    e.wait(r1, r2)
    EC = T2
    for p in range(4):
        srcs = [(T1+p, one), (T1+p, T1+p), (T1+p, T1+4+p), (T1+4+p, one), (T1+4+p, T1+4+p)]
        for k in range(5):
            e(f'v_dot2_f32_bf16 v{EC+k}, v{srcs[k][0]}, v{srcs[k][1]}, {"0" if p==0 else "v%d"%(EC+k)}')
    for sh in (8, 4, 2, 1):
        for k in range(5): e(f'v_add_f32_dpp v{EC+k}, v{EC+k}, v{EC+k} row_ror:{sh} row_mask:0xf bank_mask:0xf')
    for sw in ('v_permlane16_swap_b32', 'v_permlane32_swap_b32'):
        for k in range(5): e(f'v_mov_b32 v{EC+8+k}, v{EC+k}')
        for k in range(5): e(f'{sw} v{EC+k}, v{EC+8+k}')
        for k in range(5): e(f'v_add_f32 v{EC+k}, v{EC+k}, v{EC+8+k}')
    ES = [92, 93, 94, 95, 100]
    for k in range(5): e(f'v_readfirstlane_b32 s{ES[k]}, v{EC+k}')
    e(f'''
    s_xor_b32 s3, s{S_M}, s{S_KK}
    s_lshl_b32 s3, s3, 7
    s_mul_i32 s8, s{S_KK}, 768
    s_add_u32 s3, s3, s8
    s_add_u32 s3, s3, {L_ABC}
    v_lshl_add_u32 v{t0}, v{tok32}, 8, s3
    v_lshl_add_u32 v{t0}, v{hh}, 4, v{t0}
    s_mov_b32 s8, 7
    s_mov_b32 s9, 7
    s_mov_b64 exec, s[8:9]
    ''')
    for q in range(4): e(f'ds_write_b128 v{t0}, {v(AC+4*q,4)} offset:{32*q}')
    e('s_mov_b64 exec, -1')
    A.release(sp, 1)
    stamp(e, 'c', 'spec')
    SR = T1
    srl = []
    def preD():
        act_base(12, WS_XS)
        poll8(1)
        stamp(e, 'c', 'Dpoll')
        at['t'] = load_acts(12, 16, ACT)
        e(f's_lshl_b32 s3, s{S_T}, 14\n s_lshl_b32 s8, s{S_KK}, 13\n s_add_u32 s3, s3, s8\n s_add_u32 s12, s3, {WS_STC}\n s_add_u32 s11, s12, 4096')
        for p in range(8): srl.append(f'buffer_load_dwordx4 {v(SR+4*p,4)}, v1, {WS}, s{12 if p<4 else 11} offen offset:{(p%4)*1024} {SC}')
        at['s'] = [e(x) for x in srl]
    gemm([2, 3], False, preD, std_acts)
    stamp(e, 'c', 'Dgemm')
    poll(e, srl, [SR+4*p+3 for p in range(8)], first=at['s'])
    for p in range(1, 8):
        e(f'v_pk_add_f32 {v(SR,2)}, {v(SR,2)}, {v(SR+4*p,2)}\n v_add_f32 v{SR+2}, v{SR+2}, v{SR+4*p+2}')
    e(f's_lshl_b32 s3, s{S_W}, 10\n s_add_u32 s3, s3, {L_STX}\n v_add_u32 v{t2}, s3, v1\n v_xor_b32 v{t3}, 1024, v{t2}')
    xt = {}
    def xr_():
        xt['r'] = e(f'ds_read_b128 {v(SR+4,4)}, v{t3}')
    VC = ACT
    rc = exchange(lambda: e(f'ds_write_b128 v{t2}, {v(SR,4)}'), xr_)
    e.wait(xt['r'])
    abc = []
    for k in range(3): abc.append(colvec(VC + 16*k, L_ABC + 256*k))
    e(f'v_pk_add_f32 {v(SR,2)}, {v(SR,2)}, {v(SR+4,2)}\n v_add_f32 v{SR+2}, v{SR+2}, v{SR+6}')
    for k in range(3): e(f'v_mov_b32 v{SR+4+k}, v{SR+k}')
    for k in range(3): e(f'v_permlane32_swap_b32 v{SR+k}, v{SR+4+k}')
    S1_, S2_, S3_, S4_, S5_, S6_ = SR, SR+1, SR+2, SR+4, SR+5, SR+6
    mu, r2_, mh, rh, u1, u2 = ST, ST+2, ST+1, ST+4, ST+3, ST+5
    inv = f2u(1/512)
    e(f'''
    v_mul_f32 v{mu}, {inv}, v{S1_}
    v_mul_f32 v{u1}, {inv}, v{S2_}
    v_fma_f32 v{u1}, -v{mu}, v{mu}, v{u1}
    v_max_f32 v{u1}, 0, v{u1}
    v_add_f32 v{u1}, {f2u(1e-5)}, v{u1}
    v_rsq_f32 v{r2_}, v{u1}
    v_fma_f32 v{mh}, -v{mu}, s{ES[0]}, v{S3_}
    v_mul_f32 v{u1}, s{ES[1]}, v{mu}
    v_fma_f32 v{u1}, v{S5_}, -2.0, v{u1}
    v_fma_f32 v{u1}, v{u1}, v{mu}, v{S4_}
    v_fma_f32 v{u2}, -v{mu}, s{ES[2]}, v{S6_}
    v_add_f32 v{u2}, v{u2}, v{u2}
    v_fma_f32 v{mh}, v{mh}, v{r2_}, s{ES[3]}
    v_mul_f32 v{mh}, {inv}, v{mh}
    v_fma_f32 v{u1}, v{u1}, v{r2_}, v{u2}
    v_fma_f32 v{u1}, v{u1}, v{r2_}, s{ES[4]}
    v_mul_f32 v{u1}, {inv}, v{u1}
    v_fma_f32 v{u1}, -v{mh}, v{mh}, v{u1}
    v_max_f32 v{u1}, 0, v{u1}
    v_add_f32 v{u1}, {f2u(1e-5)}, v{u1}
    v_rsq_f32 v{rh}, v{u1}
    ''')
    al, be, de = ST+6, ST+8, ST+10
    e(f'''
    v_mul_f32 v{al}, v{rh}, v{r2_}
    v_mul_f32 v{be}, v{al}, v{mu}
    v_mul_f32 v{de}, v{rh}, v{mh}
    ''')
    e.wait(rc)
    for p in range(0, 16, 2): e(f'v_pk_add_f32 {v(AC+p,2)}, {v(AC+p,2)}, {v(RC+p,2)}')
    e.wait(abc)
    abc2 = [colvec(RC, L_ABC + 768), colvec(T1, L_ABC + 768 + 256), colvec(T2, L_ABC + 768 + 512)]
    bc = 'op_sel_hi:[1,0,1]'
    for p in range(0, 16, 2): e(f'v_pk_mul_f32 {v(AC+p,2)}, {v(AC+p,2)}, {v(al,2)} op_sel_hi:[1,0]')
    for (src, co, neg) in ((VC, de, True), (VC+16, be, True), (VC+32, rh, False)):
        for p in range(0, 16, 2):
            e(f'v_pk_fma_f32 {v(AC+p,2)}, {v(src+p,2)}, {v(co,2)}, {v(AC+p,2)} {bc}' + (' neg_lo:[0,1,0] neg_hi:[0,1,0]' if neg else ''))
    for k, (src, co, neg) in enumerate(((RC, de, True), (T1, be, True), (T2, rh, False))):
        e.wait(abc2[k])
        for p in range(0, 16, 2):
            e(f'v_pk_fma_f32 {v(AC+p,2)}, {v(src+p,2)}, {v(co,2)}, {v(AC+p,2)} {bc}' + (' neg_lo:[0,1,0] neg_hi:[0,1,0]' if neg else ''))
    gelu_pack(e, AC, 16, PK, RC, 88)
    e(f'''
    s_lshr_b32 s3, s{S_J}, 2
    s_add_u32 s3, s3, 1
    s_sub_u32 s8, 0, s3
    s_bitcmp1_b32 s{S_J}, 1
    s_cselect_b32 s3, s8, s3
    s_lshl_b32 s8, s{S_T}, 5
    s_add_u32 s3, s3, s8
    v_add_u32 v{t0}, s3, v{tok32}
    v_lshrrev_b32 v{t1}, 5, v{t0}
    v_lshlrev_b32 v{t1}, 15, v{t1}
    v_and_b32 v{t2}, 31, v{t0}
    v_lshl_add_u32 v{t1}, v{t2}, 4, v{t1}
    v_lshl_add_u32 v{t1}, v{hh}, 9, v{t1}
    v_mov_b32 v{t2}, 0x7fffffff
    v_cmp_gt_u32 vcc, 2048, v{t0}
    v_cndmask_b32 v{t1}, v{t2}, v{t1}, vcc
    s_lshl_b32 s3, s{S_J}, 12
    s_lshl_b32 s8, s{S_KK}, 11
    s_add_u32 s3, s3, s8
    s_add_u32 s12, s3, {WS_H1}
    ''')
    stt = [e(f'buffer_store_dwordx4 {v(PK+4*f,4)}, v{t1}, {WS}, s12 offen offset:{1024*f} {SC}') for f in range(2)]
    flag_addr(10, 2)
    ceb = colvec(T2, L_OWN + 512); csb = colvec(T1, L_OWN + 256)
    e.wait(stt)
    set_flag(e, t0, 10)
    stamp(e, 'c', 'Dpub')
    e.wait(ceb, csb)
    for p in range(0, 16, 2):
        e(f'v_pk_add_f32 {v(HX+p,2)}, {v(X2+p,2)}, {v(mu,2)} op_sel_hi:[1,0] neg_lo:[0,1] neg_hi:[0,1]')
        e(f'v_pk_mul_f32 {v(HX+p,2)}, {v(HX+p,2)}, {v(r2_,2)} op_sel_hi:[1,0]')
        e(f'v_pk_fma_f32 {v(HX+p,2)}, {v(HX+p,2)}, {v(T2+p,2)}, {v(T1+p,2)}')
        e(f'v_cvt_pk_bf16_f32 v{t0}, v{HX+p}, v{HX+p+1}')
        unpack(e, HX+p, HX+p+1, t0)
    vlo = A.alloc(1); vhi = A.alloc(1)
    def preE():
        act_base(12, WS_H1)
        e(f'''
        v_and_b32 v{t0}, 7, v0
        v_lshlrev_b32 v{vfl}, 2, v{t0}
        v_and_b32 v{t1}, 12, v0
        s_cmp_eq_u32 s{S_T}, 0
        s_cselect_b32 s8, 128, 0
        s_cmp_eq_u32 s{S_T}, 63
        s_movk_i32 s9, 256
        s_cselect_b32 s9, 128, s9
        v_mov_b32 v{t2}, 128
        v_mov_b32 v{t3}, s8
        v_cmp_eq_u32 vcc, 8, v{t1}
        v_cndmask_b32 v{t2}, v{t2}, v{t3}, vcc
        v_mov_b32 v{t3}, s9
        v_cmp_eq_u32 vcc, 12, v{t1}
        v_cndmask_b32 v{t2}, v{t2}, v{t3}, vcc
        v_add_u32 v{vfl}, v{t2}, v{vfl}
        s_lshl_b32 s3, s{S_T}, 7
        s_lshl_b32 s8, s{S_KK}, 5
        s_add_u32 s3, s3, s8
        s_add_u32 s11, s3, {WS_FLAGS + 2*8192 - 128}
        s_lshl_b32 s3, s{S_T}, 5
        v_add_u32 v{t0}, s3, v{tok32}
        v_mov_b32 v{t2}, 0x7fffffff
        v_cmp_lt_u32 vcc, s{S_KK}, v{t0}
        v_cndmask_b32 v{vlo}, v{t2}, v1, vcc
        s_sub_u32 s3, 2047, s{S_KK}
        v_cmp_gt_u32 vcc, s3, v{t0}
        v_cndmask_b32 v{vhi}, v{t2}, v1, vcc
        ''')
        poll(e, [f'buffer_load_dword v{t0}, v{vfl}, {WS}, s11 offen sc1'], [t0])
        stamp(e, 'c', 'Epoll')
        at['t'] = load_acts(12, 16, ACT, voff=lambda f: vlo if f < 8 else vhi)
    gemm([4, 5], False, preE, std_acts)
    stamp(e, 'c', 'Egemm')
    out_base(12, WS_X1)
    cgb = colvec(T1, L_OWN + 768)
    rc = exchange()
    for q in range(4):
        e.wait(rc[q])
        for p in (4*q, 4*q+2):
            e(f'v_pk_add_f32 {v(AC+p,2)}, {v(AC+p,2)}, {v(RC+p,2)}')
            e(f'v_pk_add_f32 {v(HX+p,2)}, {v(HX+p,2)}, {v(AC+p,2)}')
            e(f'v_cvt_pk_bf16_f32 v{PK+p//2}, v{HX+p}, v{HX+p+1}')
    stt = [e(f'buffer_store_dwordx4 {v(PK+4*f,4)}, v1, {WS}, s12 offen offset:{1024*f} {SC}') for f in range(2)]
    flag_addr(10, 3)
    for p in range(8):
        e(f'v_dot2_f32_bf16 v{ST}, v{PK+p}, v{one}, {"0" if p==0 else "v%d"%ST}')
        e(f'v_dot2_f32_bf16 v{ST+1}, v{PK+p}, v{PK+p}, {"0" if p==0 else "v%d"%(ST+1)}')
    for k in range(2): e(f'v_mov_b32 v{ST+4+k}, v{ST+k}')
    for k in range(2): e(f'v_permlane32_swap_b32 v{ST+k}, v{ST+4+k}')
    for k in range(2): e(f'v_add_f32 v{ST+k}, v{ST+k}, v{ST+4+k}')
    e.wait(stt)
    set_flag(e, t0, 10)
    e(f'''
    v_mov_b32 v{ST+2}, s{S_TAG}
    v_mov_b32 v{ST+3}, s{S_TAG}
    s_lshl_b32 s3, s{S_T}, 13
    s_lshl_b32 s8, s{S_J}, 10
    s_add_u32 s3, s3, s8
    s_lshl_b32 s8, s{S_KK}, 9
    s_add_u32 s3, s3, s8
    s_add_u32 s10, s3, {WS_STE}
    s_mov_b32 s8, -1
    s_mov_b32 s9, 0
    s_mov_b64 exec, s[8:9]
    buffer_store_dwordx4 {v(ST,4)}, v1, {WS}, s10 offen {SC}
    s_mov_b64 exec, -1
    ''')
    stamp(e, 'c', 'Epub')
    e.wait(cgb)
    for p in range(8): unpack(e, RC+2*p, RC+2*p+1, PK+p)
    for p in range(0, 16, 2):
        e(f'v_pk_fma_f32 {v(X2+p,2)}, {v(RC+p,2)}, {v(T1+p,2)}, {v(X2+p,2)}')
        e(f'v_mov_b32 v{HX+p}, v{T1+p}\n v_mov_b32 v{HX+p+1}, v{T1+p+1}')
    srl = []
    def preF():
        act_base(12, WS_X1)
        poll8(3)
        stamp(e, 'c', 'Fpoll')
        at['t'] = load_acts(12, 16, ACT)
        e(f's_lshl_b32 s3, s{S_T}, 13\n s_add_u32 s12, s3, {WS_STE}\n s_add_u32 s11, s12, 4096')
        for p in range(8): srl.append(f'buffer_load_dwordx4 {v(SR+4*p,4)}, v1, {WS}, s{12 if p<4 else 11} offen offset:{(p%4)*1024} {SC}')
        at['s'] = [e(x) for x in srl]
    r1_, m1_ = ST, ST+2
    def ubase():
        e(f'''
        s_mul_i32 s3, s{S_T}, {112*1024}
        s_lshr_b32 s8, s{S_J}, 2
        s_mul_i32 s8, s8, {56*1024}
        s_add_u32 s3, s3, s8
        s_add_u32 s92, s3, {WS_U}
        s_and_b32 s8, s{S_J}, 3
        s_lshl_b32 s9, s8, 12
        s_add_u32 s93, s92, s9
        s_lshl_b32 s9, s{S_KK}, 11
        s_add_u32 s93, s93, s9
        s_lshl_b32 s9, s8, 11
        s_add_u32 s94, s92, s9
        s_lshl_b32 s9, s{S_KK}, 10
        s_add_u32 s94, s94, s9
        s_add_u32 s94, s94, {48*1024}
        ''')
    ubase()
    for i in range(3):
        gemm([6+2*i, 7+2*i], False, preF if i == 0 else (lambda: None), std_acts)
        if i == 0:
            poll(e, srl, [SR+4*p+3 for p in range(8)], first=at['s'])
            for p in range(1, 8): e(f'v_pk_add_f32 {v(SR,2)}, {v(SR,2)}, {v(SR+4*p,2)}')
            e(f'v_mov_b32 v{SR+4}, v{SR}\n v_mov_b32 v{SR+5}, v{SR+1}')
            e(f'v_permlane32_swap_b32 v{SR}, v{SR+4}\n v_permlane32_swap_b32 v{SR+1}, v{SR+5}')
            e(f'''
            v_pk_add_f32 {v(SR,2)}, {v(SR,2)}, {v(SR+4,2)}
            v_mul_f32 v{m1_}, {inv}, v{SR}
            v_mul_f32 v{SR+1}, {inv}, v{SR+1}
            v_fma_f32 v{SR+1}, -v{m1_}, v{m1_}, v{SR+1}
            v_max_f32 v{SR+1}, 0, v{SR+1}
            v_add_f32 v{SR+1}, {f2u(1e-5)}, v{SR+1}
            v_rsq_f32 v{r1_}, v{SR+1}
            ''')
        cc3 = colvec(T1, L_C3 + 256*i)
        rc = exchange()
        e.wait(rc, cc3)
        for p in range(0, 16, 2):
            e(f'v_pk_add_f32 {v(AC+p,2)}, {v(AC+p,2)}, {v(RC+p,2)}')
            e(f'v_pk_fma_f32 {v(AC+p,2)}, {v(T1+p,2)}, {v(m1_,2)}, {v(AC+p,2)} {bc} neg_lo:[0,1,0] neg_hi:[0,1,0]')
            e(f'v_pk_mul_f32 {v(AC+p,2)}, {v(AC+p,2)}, {v(r1_,2)} op_sel_hi:[1,0]')
        gelu_pack(e, AC, 16, PK, RC, 88)
        e(f's_add_u32 s12, s93, {i*16384}')
        stt = [e(f'buffer_store_dwordx4 {v(PK+4*f,4)}, v1, {WS}, s12 offen offset:{1024*f} {SC}') for f in range(2)]
        flag_addr(10, 4+i)
        e.wait(stt)
        set_flag(e, t0, 10)
        stamp(e, 'c', f'F{i}')
    gemm([12], False, lambda: None, lambda ui, sl, n: (ACT + 4 * (n * 8 + sl), None), f3=True)
    e(f's_lshl_b32 s3, s{S_W}, 11\n s_add_u32 s3, s3, {L_MISC}\n v_add_u32 v{t2}, s3, v1\n v_xor_b32 v{t3}, 2048, v{t2}')
    e(f's_lshl_b32 s3, s{S_KK}, 6\n v_lshl_add_u32 v{t1}, v{hh}, 4, s3\n v_add_u32 v{t1}, {L_C3 + 768}, v{t1}')
    cc3 = [e(f'ds_read_b128 {v(T1+4*q,4)}, v{t1} offset:{32*q}') for q in range(2)]
    for q in range(2): e(f'ds_write_b128 v{t2}, {v(AC+8+4*q,4)} offset:{q*1024}')
    e.drain(lgkm=True)
    e('s_barrier')
    rc = [e(f'ds_read_b128 {v(RC+4*q,4)}, v{t3} offset:{q*1024}') for q in range(2)]
    e.wait(rc)
    for p in range(0, 8, 2):
        e(f'v_pk_add_f32 {v(AC+p,2)}, {v(AC+p,2)}, {v(RC+p,2)}')
        e(f'v_pk_fma_f32 {v(AC+p,2)}, {v(T1+p,2)}, {v(m1_,2)}, {v(AC+p,2)} {bc} neg_lo:[0,1,0] neg_hi:[0,1,0]')
        e(f'v_pk_mul_f32 {v(AC+p,2)}, {v(AC+p,2)}, {v(r1_,2)} op_sel_hi:[1,0]')
    gelu_pack(e, AC, 8, PK, RC, 88)
    stt = [e(f'buffer_store_dwordx4 {v(PK,4)}, v1, {WS}, s94 offen {SC}')]
    flag_addr(10, 7)
    e.wait(stt)
    set_flag(e, t0, 10)
    stamp(e, 'c', 'F3')
    bufs = [ACT + 4*k for k in range(16)] + [SR + 4*k for k in range(8)]
    gt = {}
    def gload(unit_i):
        e(f's_add_u32 s10, s12, {unit_i*8192}\n s_add_u32 s11, s10, 4096')
        for k in range(8):
            f = unit_i * 8 + k
            gt[f] = e(f'buffer_load_dwordx4 {v(bufs[f%24],4)}, v1, {WS}, s{10 if k<4 else 11} offen offset:{(k%4)*1024} {SC}')
    fl3 = []
    def preG():
        e(f'''
        v_and_b32 v{vfl}, 7, v0
        v_lshlrev_b32 v{vfl}, 2, v{vfl}
        v_lshrrev_b32 v{t1}, 3, v0
        v_and_b32 v{t1}, 3, v{t1}
        v_lshl_add_u32 v{vfl}, v{t1}, 13, v{vfl}
        s_lshl_b32 s3, s{S_T}, 7
        s_lshl_b32 s8, s{S_KK}, 5
        s_add_u32 s3, s3, s8
        s_add_u32 s11, s3, {WS_FLAGS + 4*8192}
        s_mul_i32 s3, s{S_T}, {112*1024}
        s_mul_i32 s8, s{S_KK}, {56*1024}
        s_add_u32 s3, s3, s8
        s_add_u32 s12, s3, {WS_U}
        ''')
        poll(e, [f'buffer_load_dword v{t0}, v{vfl}, {WS}, s11 offen sc1'], [t0])
        stamp(e, 'c', 'Gpoll')
        for k in range(3): gload(k)
    def midG(f):
        if f % 16 == 15 and f // 16 + 3 < 7: gload(f // 16 + 3)
    gemm(list(range(13, 20)), False, preG, lambda ui, sl, n: (bufs[(ui*8+sl) % 24], gt[ui*8+sl]), mid=midG)
    stamp(e, 'c', 'Ggemm')
    rc = exchange()
    for q in range(4):
        e.wait(rc[q])
        for p in (4*q, 4*q+2):
            e(f'v_pk_add_f32 {v(AC+p,2)}, {v(AC+p,2)}, {v(RC+p,2)}')
            e(f'v_pk_fma_f32 {v(X2+p,2)}, {v(AC+p,2)}, {v(HX+p,2)}, {v(X2+p,2)}')
            e(f'v_cvt_pk_bf16_f32 v{PK+p//2}, v{X2+p}, v{X2+p+1}')
        e(f'buffer_store_dwordx2 {v(PK+2*q,2)}, v{vrow}, {srd("out")}, 0 offen offset:{16*q}')
    stamp(e, 'c', 'end')
    dump_stamps(e, 'c')
    e('s_endpgm')
    print('compute max vgpr', A.max, file=sys.stderr)
    return e

def build():
    pro, atoks = prologue()
    c = compute(atoks)
    h = helper(atoks)
    s1 = Stream(); s1.items = pro.items + c.items
    s2 = Stream(); s2.items = pro.items + h.items
    t1 = finalize(s1)
    t2 = finalize(s2)
    i = t2.index('L_helper:')
    body = t1 + t2[i:] + 'L_exit:\n    s_endpgm\nL_code_end:\n'
    ref = open('cdna_kernels/' + NAME + '.s.ref').read().split('\n')
    head = [l for l in ref if l.startswith(';') and '@launch' not in l and 'Override' not in l and 'grid=ceil' not in l]
    out = '\n'.join(head) + f'\n; @launch grid=(256,1,1) block=(512,1,1) lds={LDS_SIZE}\n'
    out += f'''.amdgcn_target "amdgcn-amd-amdhsa--gfx950"
.text
.globl {NAME}_kernel
.p2align 8
.type {NAME}_kernel,@function
{NAME}_kernel:
{body}
.section .rodata,"a"
.p2align 6
.amdhsa_kernel {NAME}_kernel
  .amdhsa_next_free_vgpr 256
  .amdhsa_next_free_sgpr 102
  .amdhsa_accum_offset 256
  .amdhsa_group_segment_fixed_size 0
  .amdhsa_kernarg_size 104
  .amdhsa_user_sgpr_count 2
  .amdhsa_user_sgpr_kernarg_segment_ptr 1
  .amdhsa_system_sgpr_workgroup_id_x 1
.end_amdhsa_kernel
'''
    return out

if __name__ == '__main__':
    o = [a for a in sys.argv[1:] if not a.startswith('--')][0]
    open(o, 'w').write(build())
    if STAMPS:
        import json
        json.dump(stamp_names, open(o + '.stamps.json', 'w'))
```
